```python
import torch

def _softmax(x, axis=-1):
    return torch.softmax(x, dim=axis)
def _gelu(x):
    return torch.nn.functional.gelu(x, approximate="tanh")
def _silu(x):
    return torch.nn.functional.silu(x)
def _sigmoid(x):
    return torch.sigmoid(x)
def _layernorm(x, axis=-1, eps=1e-5):
    m = x.mean(dim=axis, keepdim=True)
    v = x.var(dim=axis, keepdim=True, unbiased=False)
    return (x - m) / torch.sqrt(v + eps)
def _scatter_add(tgt, idx, src, axis=0):
    return tgt.clone().index_add_(axis, idx, src)
def _segment_sum(src, seg, n):
    out = torch.zeros((n,) + src.shape[1:], dtype=src.dtype)
    return out.index_add_(0, seg, src)
def _pad(x, pw):
    flat = tuple(v for pair in reversed(pw) for v in pair)
    return torch.nn.functional.pad(x, flat)

kernel_name = 'parallel_sum__gqa_block_cached__swiglu_ffn__decode'

def setup_inputs():

    _w = (lambda a: (lambda t: t.to(torch.bfloat16) if t.is_floating_point() else t)(torch.as_tensor(a)))
    def _A_setup():
        B, Sq, D = 1, 1, 576
        Hq, Hkv, Sk, Dh = 32, 16, 16384, 128
        assert Hq % Hkv == 0, (Hq, Hkv)
        return {
            "x": _w((lambda *s: torch.randn(*s, dtype=torch.bfloat16) * 0.05)(B, Sq, D)),
            "k_cache": _w((lambda *s: torch.randn(*s, dtype=torch.bfloat16) * 3.2)(B, Hkv, Sk, Dh)),
            "v_cache": _w((lambda *s: torch.randn(*s, dtype=torch.bfloat16) * 1.6)(B, Hkv, Sk, Dh)),
            "wq": _w((lambda *s: torch.randn(*s, dtype=torch.bfloat16) * 3.2)(D, Hq * Dh) * (D ** -0.5)),
            "wo": _w((lambda *s: torch.randn(*s, dtype=torch.bfloat16) * 1.6)(Hq * Dh, D) * ((Hq * Dh) ** -0.5)),
        }
    _A_in = _A_setup()

    def _B_setup():
        B, S, D, F = 1, 1, 576, 4608
        return {
            "x": _w((lambda *s: torch.randn(*s, dtype=torch.bfloat16) * 0.05)(B, S, D)),
            "w_gate": _w((lambda *s: torch.randn(*s, dtype=torch.bfloat16) * 0.05)(D, F)),
            "w_up": _w((lambda *s: torch.randn(*s, dtype=torch.bfloat16) * 0.05)(D, F)),
            "w_down": _w((lambda *s: torch.randn(*s, dtype=torch.bfloat16) * 0.05)(F, D)),
        }
    _B_in = _B_setup()

    return {
        "A_x": _A_in["x"],
        "A_k_cache": _A_in["k_cache"],
        "A_v_cache": _A_in["v_cache"],
        "A_wq": _A_in["wq"],
        "A_wo": _A_in["wo"],
        "B_x": _B_in["x"],
        "B_w_gate": _B_in["w_gate"],
        "B_w_up": _B_in["w_up"],
        "B_w_down": _B_in["w_down"],
    }

def reference(A_x, A_k_cache, A_v_cache, A_wq, A_wo, B_x, B_w_gate, B_w_up, B_w_down):
    def _A_ref(x, k_cache, v_cache, wq, wo):
        B, Sq, D = x.shape
        Hq, Dh = 32, 128
        Hkv = k_cache.shape[1]
        rep = Hq // Hkv
        q = (lambda x, *d: x.permute(*d))((x @ wq).reshape(B, Sq, Hq, Dh), 0, 2, 1, 3)
        k = (lambda x, n, axis: torch.repeat_interleave(x, n, dim=axis))(k_cache, rep, axis=1)
        v = (lambda x, n, axis: torch.repeat_interleave(x, n, dim=axis))(v_cache, rep, axis=1)
        scores = torch.einsum("bhqd,bhkd->bhqk", q, k) * (Dh ** -0.5)
        p = _softmax(scores, axis=-1)
        o = torch.einsum("bhqk,bhkd->bhqd", p, v)
        return (lambda x, *d: x.permute(*d))(o, 0, 2, 1, 3).reshape(B, Sq, Hq * Dh) @ wo

    def _B_ref(x, w_gate, w_up, w_down):
        g = _silu(x @ w_gate)
        u = x @ w_up
        return (g * u) @ w_down

    x = A_x
    xn = _layernorm(x, axis=-1)
    return x + _A_ref(xn, A_k_cache, A_v_cache, A_wq, A_wo) + _B_ref(xn, B_w_gate, B_w_up, B_w_down)
```

```python
import re

TRANS = ('v_exp_f32', 'v_log_f32', 'v_rcp_f32', 'v_rsq_f32', 'v_sqrt_f32', 'v_sin_f32', 'v_cos_f32', 'v_rcp_iflag_f32')
REG = re.compile(r'^(-|\|)?(abs\()?([vsa])(\d+|\[(\d+):(\d+)\])\)?\|?$')


def regs_of(op):
    op = op.strip()
    if op == 'vcc':
        return {'vcc'}
    if op == 'exec':
        return {'exec'}
    if op == 'm0':
        return {'m0'}
    m = REG.match(op)
    if not m:
        return set()
    k = m.group(3)
    if m.group(5) is not None:
        return {f'{k}{i}' for i in range(int(m.group(5)), int(m.group(6)) + 1)}
    return {f'{k}{m.group(4)}'}


class Ins:
    def __init__(self, text):
        self.text = text
        t = text.split(';')[0].strip()
        self.label = t.endswith(':') or t.startswith('.') or not t
        self.op = ''
        self.w = set(); self.r = set()
        self.kind = 'none'
        if self.label:
            return
        parts = t.split(None, 1)
        self.op = op = parts[0]
        rest = parts[1] if len(parts) > 1 else ''
        ops = []; depth = 0; cur = ''
        for ch in rest:
            if ch == '[': depth += 1
            if ch == ']': depth -= 1
            if ch == ',' and depth == 0:
                ops.append(cur.strip()); cur = ''
            else:
                cur += ch
        if cur.strip():
            ops.append(cur.strip())
        mods = ''
        if ops:
            last = ops[-1].split(None, 1)
            ops[-1] = last[0]
            mods = last[1] if len(last) > 1 else ''
        self.mods = mods
        R = [regs_of(o) for o in ops]
        self.dpp = op.endswith('_dpp')
        self.sdwa = op.endswith('_sdwa')
        U = lambda l: set().union(*l) if l else set()
        if op.startswith('v_mfma'):
            self.kind = 'mfma'
            self.w = R[0]; self.ab = R[1] | R[2]; self.c = R[3]; self.r = self.ab | self.c
            self.passes = 8 if '32x32' in op else 4
        elif op.startswith('v_'):
            self.kind = 'valu'
            self.w = R[0]; self.r = U(R[1:])
            if op.startswith('v_permlane'):
                self.w = R[0] | R[1]; self.r = R[0] | R[1]
            if op.startswith(('v_fmac', 'v_dot2c', 'v_writelane')) or self.dpp or 'UNUSED_PRESERVE' in mods:
                self.r |= R[0]
            if op.startswith(('v_add_co', 'v_sub_co', 'v_addc_co', 'v_subb_co')):
                self.w = R[0] | R[1]; self.r = U(R[2:])
            if op.startswith('v_cmpx'):
                self.w |= {'exec'}
            if op.startswith('v_cndmask') and len(ops) == 3:
                self.r |= {'vcc'}
        elif op.startswith(('buffer_', 'global_')):
            self.kind = 'vmem'
            if '_load' in op and 'lds' not in mods and '_lds_' not in op:
                self.w = R[0]; self.r = U(R[1:])
            else:
                self.r = U(R)
            self.wide_store = ('store_dwordx4' in op or 'store_dwordx3' in op)
            if self.wide_store:
                self.data = R[0] if op.startswith('buffer_') else R[1]
        elif op.startswith('ds_'):
            self.kind = 'ds'
            if op.startswith('ds_read') or '_rtn' in op or 'permute' in op or 'swizzle' in op:
                self.w = R[0]; self.r = U(R[1:])
            else:
                self.r = U(R)
        elif op.startswith('s_'):
            self.kind = 'salu'
            if op.startswith(('s_cmp', 's_cbranch', 's_branch', 's_waitcnt', 's_nop', 's_barrier', 's_sleep', 's_setprio', 's_endpgm', 's_bitcmp')):
                self.r = U(R)
            else:
                self.w = R[0] if R else set(); self.r = U(R[1:])
                if 'saveexec' in op:
                    self.w |= {'exec'}

    def states(self):
        if self.label:
            return 0
        if self.op == 's_nop':
            return int(self.text.split(';')[0].split()[1], 0) + 1
        return 1


def need(p, c):
    n = 0
    vw = {x for x in p.w if x[0] in 'va' and x != 'vcc'}
    sw = p.w - vw
    if p.kind == 'valu':
        isdot = p.op.startswith('v_dot')
        if c.kind == 'valu':
            if c.dpp and vw & c.r: n = max(n, 2)
            if c.op.startswith('v_permlane') and vw & c.r: n = max(n, 2)
            if c.op.startswith(('v_readlane', 'v_readfirstlane')) and vw & c.r: n = max(n, 1)
            if p.op.replace('_e32', '').replace('_e64', '') in TRANS and vw & c.r: n = max(n, 1)
            if p.sdwa and vw & (c.r | c.w): n = max(n, 1)
            if sw & c.r: n = max(n, 4 if c.op.startswith(('v_readlane', 'v_writelane')) else 2)
            if 'exec' in sw and c.dpp: n = max(n, 5)
            if 'exec' in sw and c.op.startswith(('v_readlane', 'v_readfirstlane', 'v_writelane', 'v_permlane')): n = max(n, 4)
            if isdot and vw & (c.r | c.w):
                if not (c.op == p.op and not (vw & (c.r - c.w))): n = max(n, 3)
        if c.kind == 'mfma':
            if vw & c.r: n = max(n, 3 if isdot else 2)
            if 'exec' in sw: n = max(n, 4)
        if c.kind == 'vmem' and sw & c.r: n = max(n, 5)
        if c.kind in ('vmem', 'ds') and isdot and vw & c.r: n = max(n, 3)
        if c.kind in ('vmem', 'ds') and p.sdwa and vw & c.r: n = max(n, 1)
        if c.kind in ('vmem', 'ds') and p.op.replace('_e32', '') in TRANS and vw & c.r: n = max(n, 1)
        if c.kind == 'salu' and sw & c.r: n = max(n, 1)
    if p.kind == 'mfma':
        full = {4: 8, 8: 12}[p.passes]
        if c.kind == 'mfma':
            if p.w & c.ab: n = max(n, full)
            if p.w & c.c and not (p.w == c.c and p.passes == c.passes): n = max(n, full - 2)
            if p.w & c.w and not (p.w == c.c): n = max(n, full - 2)
        elif c.kind in ('valu', 'vmem', 'ds'):
            if p.w & (c.r | c.w): n = max(n, full)
            if c.kind == 'valu' and p.c & c.w: n = max(n, p.passes - 1)
    if p.kind == 'vmem' and getattr(p, 'wide_store', False):
        if p.data & c.w: n = max(n, 2)
    if p.kind == 'salu':
        if 'm0' in p.w and c.kind in ('vmem', 'ds'): n = max(n, 1)
    return n


class Asm:
    def __init__(self):
        self.lines = []

    def __call__(self, text):
        for l in text.split('\n'):
            l = l.strip()
            if l:
                self.lines.append(l)

    def render(self):
        out = []
        nnop = 0
        for l in self.lines:
            c = Ins(l)
            if not c.label:
                dist = 0; pad = 0
                for p in reversed(out):
                    if dist >= 20: break
                    if not p.label:
                        pad = max(pad, need(p, c) - dist)
                        if p.op in ('s_branch', 's_endpgm'): break
                    dist += p.states()
                if pad > 0:
                    out.append(Ins(f's_nop {pad - 1}')); nnop += 1
            out.append(c)
        self.nnop = nnop
        return '\n'.join((i.text if (i.label) else '  ' + i.text) for i in out) + '\n'
```

```python
import sys, os, struct
from asmlib import Asm

NAME = 'parallel_sum__gqa_block_cached__swiglu_ffn__decode'
HEADER = open(os.path.join(os.path.dirname(os.path.abspath(__file__)), 'header.txt')).read()


def f32(x):
    return '0x%08x' % struct.unpack('<I', struct.pack('<f', x))[0]


XN, QL, CNT, ML, OL, GUL, OP, LDS_BYTES = 0, 1280, 1792, 1824, 1920, 2048, 4096, 8192
WS_Q, WS_O, WS_Y, WS_STAMP = 4096, 65536, 1 << 20, 128 << 20
OOB = 0x40000000

DEF = dict(W=6, R=40, pol_kv='nt', pol_q='nt', pol_g='nt', pol_w='nt', ylay='pr', stamps=False,
           st='sc1', ld='sc1', WG=6, WW=6)


def gen(**kw):
    c = dict(DEF); c.update(kw)
    W, R, stamps = c['W'], c['R'], c['stamps']
    SP, SR = (2304, 16) if c['ylay'] == 'pr' else (16, 4096)
    A = Asm()
    sW, sA, sH, sS, sOff, sTag, sL2E, sScale, sSelLo, sSelHi, sHiM, sT0 = 's3', 's4', 's5', 's6', 's7', 's8', 's9', 's10', 's11', 's12', 's13', 's14'
    sT1, sSpin = 's15', 's96'
    pX, pK, pV, pWQ, pWO, pG, pU, pD, pOut, pWS = 16, 18, 20, 22, 24, 28, 30, 32, 34, 38
    nst = [0]

    def stamp(i):
        if stamps:
            A(f's_memrealtime s[{64 + 2 * i}:{65 + 2 * i}]')

    def srd(base, ptr, size):
        A(f's_mov_b32 s{base}, s{ptr}\ns_mov_b32 s{base + 1}, s{ptr + 1}\ns_mov_b32 s{base + 2}, {size:#x}\ns_mov_b32 s{base + 3}, 0x20000')

    def S(base):
        return f's[{base}:{base + 3}]'

    def V4(r):
        return f'v[{r}:{r + 3}]'

    def allred(op, v, t, steps):
        for st in steps:
            if st[0] == 'r':
                A(f'{op}_dpp v{v}, v{v}, v{v} row_ror:{st[1:]} row_mask:0xf bank_mask:0xf')
            else:
                A(f'v_mov_b32 v{t}, v{v}\nv_permlane{st}_swap_b32 v{v}, v{t}\n{op} v{v}, v{v}, v{t}')

    def proj_pair(ra, rb, xp, acc, t):
        for d in range(4):
            A(f'v_perm_b32 v{t + (2 * d) % 4}, v{rb + d}, v{ra + d}, {sSelLo}')
            A(f'v_perm_b32 v{t + (2 * d + 1) % 4}, v{rb + d}, v{ra + d}, {sSelHi}')
            A(f'v_dot2c_f32_bf16 v{acc + 2 * d}, v{t + (2 * d) % 4}, v{xp}')
            A(f'v_dot2c_f32_bf16 v{acc + 2 * d + 1}, v{t + (2 * d + 1) % 4}, v{xp}')

    def proj_reduce(acc, two_lane):
        for j in range(4):
            A(f'v_permlane32_swap_b32 v{acc + j}, v{acc + j + 4}')
        for j in range(4):
            A(f'v_add_f32 v{acc + j}, v{acc + j}, v{acc + j + 4}')
        for j in range(2):
            A(f'v_permlane16_swap_b32 v{acc + j}, v{acc + j + 2}')
        for j in range(2):
            A(f'v_add_f32 v{acc + j}, v{acc + j}, v{acc + j + 2}')
        for j in range(2):
            A(f'v_add_f32_dpp v{acc + j}, v{acc + j}, v{acc + j} row_ror:4 row_mask:0xf bank_mask:0xf')
        A(f'v_add_f32_dpp v{acc}, v{acc}, v{acc} row_ror:8 row_mask:0xf bank_mask:0xf')
        A(f'v_add_f32_dpp v{acc}, v{acc + 1}, v{acc + 1} row_ror:8 row_mask:0xf bank_mask:0xc')
        if two_lane:
            A(f'v_add_f32_dpp v{acc}, v{acc}, v{acc} quad_perm:[2,3,0,1] row_mask:0xf bank_mask:0xf')

    def tagbytes(r):
        for k in range(4):
            A(f'v_mov_b32_sdwa v{r + k}, {sTag} dst_sel:BYTE_0 dst_unused:UNUSED_PRESERVE src0_sel:BYTE_{k}')

    def tagcheck(r, dst):
        A(f'v_cmp_ne_u32_sdwa s[{dst}:{dst + 1}], v{r}, {sTag} src0_sel:BYTE_0 src1_sel:BYTE_0')
        A(f'v_cmp_ne_u32_sdwa s[52:53], v{r + 1}, {sTag} src0_sel:BYTE_0 src1_sel:BYTE_1')
        A(f'v_cmp_ne_u32_sdwa s[54:55], v{r + 2}, {sTag} src0_sel:BYTE_0 src1_sel:BYTE_2')
        A(f'v_cmp_ne_u32_sdwa vcc, v{r + 3}, {sTag} src0_sel:BYTE_0 src1_sel:BYTE_3')
        A(f's_or_b64 s[{dst}:{dst + 1}], s[{dst}:{dst + 1}], s[52:53]')
        A(f's_or_b64 s[54:55], s[54:55], vcc')
        A(f's_or_b64 s[{dst}:{dst + 1}], s[{dst}:{dst + 1}], s[54:55]')

    def mktag():
        A(f's_mul_i32 {sTag}, {sTag}, 1664525\ns_add_u32 {sTag}, {sTag}, 1013904223')

    def store_stamps(first, n, off):
        if not stamps:
            return
        A('s_waitcnt lgkmcnt(0)\ns_mov_b64 exec, 1')
        A(f's_lshl_b32 {sT0}, s2, 7\ns_add_u32 {sT0}, {sT0}, {WS_STAMP + off}\nv_mov_b32 v2, 0')
        for i in range(n):
            A(f'v_mov_b32 v4, s{64 + 2 * (first + i)}\nv_mov_b32 v5, s{65 + 2 * (first + i)}')
            A(f'buffer_store_dwordx2 v[4:5], v2, s[60:63], {sT0} offen offset:{8 * i}')

    A(f'{NAME}_kernel:')
    A('s_load_dwordx16 s[16:31], s[0:1], 0\ns_load_dwordx8 s[32:39], s[0:1], 64')
    A('s_cmp_ge_u32 s2, 256\ns_cbranch_scc1 L_end')
    A('v_lshrrev_b32 v1, 6, v0\nv_and_b32 v0, 63, v0')
    A(f's_and_b32 {sH}, s2, 7\ns_lshl_b32 {sH}, {sH}, 1\ns_bfe_u32 {sT0}, s2, 0x10003\ns_add_u32 {sH}, {sH}, {sT0}')
    A(f'v_readfirstlane_b32 {sW}, v1')
    A(f's_lshr_b32 {sS}, s2, 4\ns_lshl_b32 {sA}, {sH}, 4\ns_add_u32 {sA}, {sA}, {sS}')
    A(f's_cmp_eq_u32 {sW}, 4\ns_cbranch_scc1 L_P')

    vL, vK, vV, vG, vWo, vWo2, vY, vTmp = 0, 1, 2, 3, 4, 5, 6, 7
    vM, vLs, vMc, vE = 8, 9, 10, 11
    vTa, vTb, vPk, vT3 = 12, 13, 14, 15
    vMask, vQ, vO, vA = 16, 20, 24, 28
    vAcc, vD, vSc, vRing = 36, 44, 60, 92
    assert vRing + 4 * R <= 256
    stamp(8)
    A(f'v_and_b32 v{vK}, 15, v{vL}\nv_lshrrev_b32 v{vTmp}, 4, v{vL}\nv_lshlrev_b32 v{vK}, 6, v{vK}\nv_lshl_add_u32 v{vK}, v{vTmp}, 4, v{vK}')
    A(f's_lshl_b32 {sOff}, {sA}, 18\ns_lshl_b32 {sT0}, {sW}, 10\ns_add_u32 {sOff}, {sOff}, {sT0}')
    A('s_waitcnt lgkmcnt(0)')
    srd(40, pK, 64 << 20)

    def setup_rest():
        A(f's_load_dword {sTag}, s[{pWS}:{pWS + 1}], 0')
        srd(44, pV, 64 << 20)
        A(f's_bitcmp1_b32 {sW}, 0\ns_cselect_b32 s48, s{pU}, s{pG}\ns_cselect_b32 s49, s{pU + 1}, s{pG + 1}\ns_mov_b32 s50, {576 * 9216:#x}\ns_mov_b32 s51, 0x20000')
        srd(52, pWO, 4096 * 1152)
        srd(56, pD, 4608 * 1152)
        srd(60, pWS, 256 << 20)
        A(f's_mov_b32 {sL2E}, {f32(1.4426950408889634)}\ns_mov_b32 {sScale}, {f32(128 ** -0.5)}')
        A(f's_mov_b32 {sSelLo}, 0x05040100\ns_mov_b32 {sSelHi}, 0x07060302\ns_mov_b32 {sHiM}, 0xffff0000')
        A(f'v_lshlrev_b32 v{vV}, 4, v{vL}')
        A(f'v_and_b32 v{vTa}, 1, v{vL}\nv_lshlrev_b32 v{vTa}, 4, v{vTa}\nv_mov_b32 v{vTb}, 0xffff\nv_lshlrev_b32 v{vTb}, v{vTa}, v{vTb}')
        A(f'v_bfe_u32 v{vTa}, v{vL}, 1, 2')
        for r in range(4):
            A(f'v_cmp_eq_u32 vcc, {r}, v{vTa}\nv_cndmask_b32 v{vMask + r}, 0, v{vTb}, vcc')
        A(f'v_lshrrev_b32 v{vTa}, 2, v{vL}\nv_mul_u32_u24 v{vG}, {18 * 9216}, v{vTa}\nv_and_b32 v{vTa}, 3, v{vL}\nv_lshl_add_u32 v{vG}, v{vTa}, 4, v{vG}')
        A(f'v_mov_b32 v{vTb}, {OOB:#x}\nv_cmp_eq_u32 vcc, 3, v{vTa}\nv_cndmask_b32 v{vG}, v{vG}, v{vTb}, vcc')
        A(f'v_lshrrev_b32 v{vTa}, 3, v{vL}\nv_mul_u32_u24 v{vWo}, 1152, v{vTa}\nv_and_b32 v{vTa}, 7, v{vL}\nv_lshl_add_u32 v{vWo}, v{vTa}, 4, v{vWo}')
        A(f'v_cmp_lt_u32 vcc, 15, v{vL}\nv_cndmask_b32 v{vWo2}, v{vWo}, v{vTb}, vcc')
        A(f'v_bfe_u32 v{vPk}, v{vL}, 4, 1\nv_lshl_add_u32 v{vPk}, v{vTa}, 1, v{vPk}')
        A(f'v_lshrrev_b32 v{vTa}, 5, v{vL}\nv_lshl_add_u32 v{vTa}, v{vTa}, 2, {sW}')
        A(f'v_lshl_add_u32 v{vY}, v{vTa}, 4, v{vPk}\nv_mul_u32_u24 v{vY}, {SR}, v{vY}')
        A(f'v_add_u32 v{vPk}, 128, v{vPk}\nv_mul_u32_u24 v{vPk}, {SR}, v{vPk}')
        A(f'v_cmp_ne_u32 vcc, 0, v{vTa}\nv_cndmask_b32 v{vPk}, v{vPk}, v{vTb}, vcc')
        A(f'v_and_b32 v{vTa}, 8, v{vL}\nv_cmp_ne_u32 vcc, 0, v{vTa}\nv_cndmask_b32 v{vY}, v{vY}, v{vPk}, vcc')
        A(f'v_mov_b32 v{vM}, {f32(-3.0e38)}\nv_mov_b32 v{vLs}, 0')
        for r in range(4):
            A(f'v_mov_b32 v{vO + r}, 0')
        for r in range(8):
            A(f'v_mov_b32 v{vAcc + r}, 0')
        A(f'v_bfe_u32 v{vTa}, v{vL}, 3, 1\nv_lshlrev_b32 v{vTa}, 8, v{vTa}\nv_and_b32 v{vTb}, 3, v{vL}\nv_lshl_add_u32 v{vTa}, v{vTb}, 6, v{vTa}')
        A(f'v_lshrrev_b32 v{vTb}, 4, v{vL}\nv_lshl_add_u32 v{vTmp}, v{vTb}, 4, v{vTa}')

    loads = [('K', j) for j in range(64)] + [('V', j) for j in range(64)] + [('G', u) for u in range(18)] + \
            [('W', tt, rb) for tt in range(3) for rb in range(5)]
    N = len(loads)
    free = [vRing + 4 * i for i in range(R)]
    slot = {}

    def issue(t):
        ld = loads[t]
        r = free.pop(0); slot[t] = r
        if ld[0] in 'KV':
            if ld == ('V', 0):
                A(f's_sub_u32 {sOff}, {sOff}, {63 * 4096}')
            elif ld[1]:
                A(f's_addk_i32 {sOff}, 0x1000')
            A(f'buffer_load_dwordx4 {V4(r)}, v{vK if ld[0] == "K" else vV}, {S(40 if ld[0] == "K" else 44)}, {sOff} offen {c["pol_kv"]}')
        elif ld[0] == 'G':
            if ld[1] == 0:
                A(f's_mul_i32 {sOff}, {sA}, 36\ns_and_b32 {sOff}, {sOff}, -16\ns_lshr_b32 {sT0}, {sW}, 1\ns_mul_i32 {sT0}, {sT0}, {288 * 9216}\ns_add_u32 {sOff}, {sOff}, {sT0}')
            else:
                A(f's_addk_i32 {sOff}, 9216')
            A(f'buffer_load_dwordx4 {V4(r)}, v{vG}, {S(48)}, {sOff} offen {c["pol_g"]}')
        else:
            _, tt, rb = ld
            if (tt, rb) == (0, 0):
                A(f's_lshl_b32 {sT0}, {sW}, 7\ns_mul_i32 s97, {sA}, 18432\ns_add_u32 s97, s97, {sT0}\ns_mul_i32 s98, {sA}, 20736\ns_add_u32 s98, s98, {sT0}')
            if (tt, rb) == (2, 0):
                A(f's_cmp_eq_u32 {sW}, 0\ns_cselect_b32 s97, s97, {OOB:#x}\ns_cselect_b32 s98, s98, {OOB:#x}')
            base, k, sr = ('s97', rb, 52) if rb < 2 else ('s98', rb - 2, 56)
            so = base
            if k:
                A(f's_add_u32 {sT0}, {base}, {9216 * k}'); so = sT0
            A(f'buffer_load_dwordx4 {V4(r)}, v{vWo2 if rb == 4 else vWo}, {S(sr)}, {so} offen offset:{512 * tt} {c["pol_w"]}')

    def kmfma(t, d):
        A(f'v_mfma_f32_16x16x32_bf16 {V4(d)}, {V4(slot[t])}, {V4(vQ)}, 0')
        free.append(slot[t])

    def kpair(k):
        cur = vD + 8 * (k & 1); prv = vD + 8 * ((k - 1) & 1)
        if k == 0:
            kmfma(0, cur); kmfma(1, cur + 4); return
        for r in range(4):
            for tv, d in ((vTa, prv), (vTb, prv + 4)):
                qp = f'quad_perm:[{r},{r},{r},{r}] row_mask:0xf bank_mask:0xf'
                if r == 0: A(f'v_mov_b32_dpp v{tv}, v{d} {qp}')
                else: A(f'v_add_f32_dpp v{tv}, v{d + r}, v{tv} {qp}')
            if k < 32 and r < 2:
                kmfma(2 * k + r, cur + 4 * r)
        A(f'v_max3_f32 v{vM}, v{vTa}, v{vTb}, v{vM}\nv_cvt_pk_bf16_f32 v{vPk}, v{vTa}, v{vTb}')
        A(f'v_lshlrev_b32 v{vTa}, 16, v{vPk}\nv_and_b32 v{vTb}, {sHiM}, v{vPk}\nv_mul_f32 v{vTa}, {sScale}, v{vTa}\nv_mul_f32 v{vTb}, {sScale}, v{vTb}')
        A(f'v_cvt_pk_bf16_f32 v{vSc + k - 1}, v{vTa}, v{vTb}')

    def vprep(j):
        a = vA + 4 * (j & 1)
        if j & 1: A(f'v_and_b32 v{vE}, {sHiM}, v{vSc + j // 2}')
        else: A(f'v_lshlrev_b32 v{vE}, 16, v{vSc + j // 2}')
        A(f'v_fma_f32 v{vE}, v{vE}, {sL2E}, -v{vMc}\nv_exp_f32 v{vE}, v{vE}')
        A(f'v_cvt_pk_bf16_f32 v{vPk}, v{vE}, v{vE}\nv_add_f32 v{vLs}, v{vLs}, v{vE}')
        for r in range(4):
            A(f'v_and_b32 v{a + r}, v{vMask + r}, v{vPk}')

    def mfin():
        kpair(32)
        allred('v_max_f32', vM, vTa, ['32', '16'])
        A(f'v_cvt_pk_bf16_f32 v{vPk}, v{vM}, v{vM}\nv_lshlrev_b32 v{vM}, 16, v{vPk}\nv_mul_f32 v{vM}, {sScale}, v{vM}')
        A(f'v_cvt_pk_bf16_f32 v{vPk}, v{vM}, v{vM}\nv_lshlrev_b32 v{vM}, 16, v{vPk}\nv_mul_f32 v{vMc}, {sL2E}, v{vM}')
        stamp(11)
        A(f'v_lshrrev_b32 v{vTa}, 2, v{vL}\nv_mul_u32_u24 v{vTa}, 36, v{vTa}\ns_lshr_b32 {sT0}, {sW}, 1\ns_mul_i32 {sT0}, {sT0}, 576\nv_add_u32 v{vTa}, {sT0}, v{vTa}')
        for i in range(4):
            A(f'ds_read2_b32 v[{vD + 2 * i}:{vD + 2 * i + 1}], v{vTa} offset0:{XN // 4 + 2 * i} offset1:{XN // 4 + 2 * i + 1}')
        A(f'ds_read_b32 v{vD + 8}, v{vTa} offset:{XN + 32}')
        vprep(0)

    def vtile(j):
        t = 64 + j
        A(f'v_mfma_f32_16x16x32_bf16 {V4(vO)}, {V4(vA + 4 * (j & 1))}, {V4(slot[t])}, {V4(vO)}')
        free.append(slot[t])
        if j < 63:
            vprep(j + 1)
        if j == 62:
            allred('v_add_f32', vLs, vTa, ['32', '16'])
            A(f'v_lshlrev_b32 v{vTa}, 2, v{vL}\ns_lshl_b32 {sT0}, {sW}, 3\nv_add_u32 v{vTa}, {sT0}, v{vTa}')
            A(f's_mov_b64 exec, 0x101\nds_write_b64 v{vTa}, v[{vM}:{vM + 1}] offset:{ML}\ns_mov_b64 exec, -1')
            A(f's_lshl_b32 {sT0}, {sW}, 10\nv_add_u32 v{vTa}, {sT0}, v{vV}\nv_mov_b32 v{vTb}, 1')
        if j == 63:
            A(f'ds_write_b128 v{vTa}, {V4(vO)} offset:{OP}')
            A(f's_mov_b64 exec, 1\nds_add_u32 v{vL}, v{vTb} offset:{CNT}\ns_mov_b64 exec, -1')
            stamp(12)

    def gpair(k):
        if k == 0: A('s_waitcnt lgkmcnt(0)')
        ta, tb = 128 + 2 * k, 129 + 2 * k
        proj_pair(slot[ta], slot[tb], vD + k, vAcc, vTa)
        free.append(slot[ta]); free.append(slot[tb])

    tasks = [(2 * k + 1, 2, (lambda k=k: kpair(k))) for k in range(32)]
    tasks += [(63, 2, mfin)]
    tasks += [(64 + j, 1, (lambda j=j: vtile(j))) for j in range(64)]
    tasks += [(129 + 2 * k, 2, (lambda k=k: gpair(k))) for k in range(9)]
    ti = 0
    landed = -1
    for t in range(N):
        win = W if t < 128 else (c['WG'] if t < 146 else c['WW'])
        if t - win > landed:
            A(f's_waitcnt vmcnt({win - 1})'); landed = t - win
        issue(t)
        if t == W - 1:
            setup_rest()
        if t == R - 1:
            stamp(9)
            A('s_waitcnt lgkmcnt(0)\ns_barrier')
            A(f'ds_read_b128 {V4(vQ)}, v{vTmp} offset:{QL}')
            mktag()
            stamp(10)
            A('s_waitcnt lgkmcnt(0)')
        if t >= R - 1:
            budget = 2
            while ti < len(tasks) and budget > 0 and tasks[ti][0] <= landed:
                budget -= tasks[ti][1]; tasks[ti][2](); ti += 1
    while ti < len(tasks):
        if tasks[ti][0] > landed:
            landed = tasks[ti][0]
            A(f's_waitcnt vmcnt({N - 1 - landed})')
        tasks[ti][2](); ti += 1
    proj_reduce(vAcc, False)
    A(f'v_and_b32 v{vTa}, 3, v{vL}\nv_lshrrev_b32 v{vTb}, 3, v{vL}\nv_lshl_add_u32 v{vTa}, v{vTa}, 3, v{vTb}\ns_lshl_b32 {sT0}, {sW}, 5\nv_add_lshl_u32 v{vTa}, v{vTa}, {sT0}, 2')
    A(f'ds_write_b32 v{vTa}, v{vAcc} offset:{GUL}')
    A(f's_and_b32 {sT0}, {sA}, 3\ns_lshl_b32 {sT0}, {sT0}, 1\nv_add_lshl_u32 v{vTa}, v{vTb}, {sT0}, 2\nv_add_u32 v{vTa}, {GUL}, v{vTa}\nv_lshlrev_b32 v{vTb}, 2, v{vTb}')
    stamp(13)
    A('s_waitcnt lgkmcnt(0)\ns_barrier')
    for rb in range(3):
        A(f'ds_read2_b32 v[{vD + 4 * rb}:{vD + 4 * rb + 1}], v{vTa} offset0:{8 * rb} offset1:{64 + 8 * rb}')
        A(f'ds_read2_b32 v[{vD + 4 * rb + 2}:{vD + 4 * rb + 3}], v{vTa} offset0:{32 + 8 * rb} offset1:{96 + 8 * rb}')
    A(f'ds_read_b32 v{vD + 12}, v{vTb} offset:{OL}\nds_read_b32 v{vD + 13}, v{vTb} offset:{OL + 32}')
    vC, vDt = vSc, vSc + 20
    A(f's_mul_i32 {sOff}, {sA}, {SP}\ns_add_u32 {sOff}, {sOff}, {WS_Y}')
    A('s_waitcnt lgkmcnt(0)')
    g = [vD + 4 * rb for rb in range(3)]
    for x in g: A(f'v_add_f32 v{x}, v{x}, v{x + 1}\nv_add_f32 v{x + 2}, v{x + 2}, v{x + 3}')
    for x in g: A(f'v_cvt_pk_bf16_f32 v{x + 1}, v{x}, v{x + 2}')
    for x in g: A(f'v_lshlrev_b32 v{x}, 16, v{x + 1}\nv_and_b32 v{x + 2}, {sHiM}, v{x + 1}')
    for x in g: A(f'v_mul_f32 v{x + 1}, {sL2E}, v{x}')
    for x in g: A(f'v_exp_f32 v{x + 1}, -v{x + 1}')
    for x in g: A(f'v_add_f32 v{x + 1}, 1.0, v{x + 1}')
    for x in g: A(f'v_rcp_f32 v{x + 1}, v{x + 1}')
    for x in g: A(f'v_mul_f32 v{x}, v{x}, v{x + 1}')
    for x in g: A(f'v_cvt_pk_bf16_f32 v{x}, v{x}, v{x}')
    for x in g: A(f'v_and_b32 v{x}, {sHiM}, v{x}')
    for x in g: A(f'v_mul_f32 v{x}, v{x}, v{x + 2}')
    for x in g: A(f'v_cvt_pk_bf16_f32 v{x}, v{x}, v{x}')
    src = [vD + 12, vD + 13] + g
    for rb in range(5):
        for r in range(4):
            A(f'v_and_b32 v{vC + 4 * rb + r}, v{vMask + r}, v{src[rb]}')
    for tt in range(3):
        for rb in range(5):
            t = 146 + 5 * tt + rb
            if t > landed:
                A(f's_waitcnt vmcnt({N - 1 - t})'); landed = t
            d = vDt + 4 * tt
            A(f'v_mfma_f32_16x16x32_bf16 {V4(d)}, {V4(vC + 4 * rb)}, {V4(slot[t])}, {V4(d) if rb else 0}')
    stamp(14)
    for r in range(4): A(f'v_permlane32_swap_b32 v{vDt + r}, v{vDt + 4 + r}')
    for r in range(4): A(f'v_permlane32_swap_b32 v{vDt + 8 + r}, v{vD + r}')
    for r in range(4): A(f'v_add_f32_dpp v{vDt + r}, v{vDt + 4 + r}, v{vDt + r} row_ror:8 row_mask:0xf bank_mask:0xf')
    for r in range(4): A(f'v_add_f32_dpp v{vDt + r}, v{vDt + 8 + r}, v{vD + r} row_ror:8 row_mask:0xf bank_mask:0xc')
    tagbytes(vDt)
    A(f'buffer_store_dwordx4 {V4(vDt)}, v{vY}, {S(60)}, {sOff} offen {c["st"]}')
    A('s_barrier')
    if stamps:
        stamp(15)
        A(f's_cmp_lg_u32 {sW}, 0\ns_cbranch_scc1 L_end')
        store_stamps(8, 8, 64)
    A('s_endpgm')

    A('L_P:')
    stamp(0)
    vX, vE0, vWq, vAc, vXp, vT = 8, 16, 64, 28, 36, 48
    v16, vQo, vS_, vU, vXo = 1, 2, 3, 4, 6
    A('s_setprio 2')
    A(f'v_lshlrev_b32 v{v16}, 4, v0\nv_lshlrev_b32 v{vS_}, 1, v0')
    A(f'v_lshrrev_b32 v{vU}, 1, v0\nv_mul_u32_u24 v{vQo}, {18 * 8192}, v{vU}\nv_and_b32 v5, 1, v0\nv_lshl_add_u32 v{vQo}, v5, 4, v{vQo}')
    A(f's_lshl_b32 {sOff}, {sA}, 5')
    A('s_waitcnt lgkmcnt(0)')
    srd(40, pX, 1152)
    srd(44, pWQ, 576 * 8192)
    A(f'buffer_load_dwordx4 {V4(vX)}, v{v16}, {S(40)}, 0 offen')
    A(f'buffer_load_ushort v{vX + 4}, v{vS_}, {S(40)}, 0 offen offset:1024')
    A(f's_load_dword {sTag}, s[{pWS}:{pWS + 1}], 0')
    for u in range(18):
        if u: A(f's_addk_i32 {sOff}, 8192')
        A(f'buffer_load_dwordx4 {V4(vWq + 4 * u)}, v{vQo}, {S(44)}, {sOff} offen {c["pol_q"]}')
    A(f'v_lshrrev_b32 v{vXo}, 4, v0\nv_lshl_add_u32 v{vXo}, s2, 2, v{vXo}\nv_lshlrev_b32 v{vXo}, 1, v{vXo}')
    A(f'buffer_load_ushort v7, v{vXo}, {S(40)}, 0 offen')
    srd(60, pWS, 256 << 20)
    srd(48, pOut, 1152)
    A(f's_mov_b32 {sL2E}, {f32(1.4426950408889634)}')
    A(f's_mov_b32 {sSelLo}, 0x05040100\ns_mov_b32 {sSelHi}, 0x07060302\ns_mov_b32 {sHiM}, 0xffff0000')
    A(f'v_mov_b32 v{vT}, 0\nds_write_b32 v{vT}, v{vT} offset:{CNT}')
    for r in range(8): A(f'v_mov_b32 v{vAc + r}, 0')
    A('s_waitcnt vmcnt(19)')
    for d in range(4):
        A(f'v_lshlrev_b32 v{vE0 + 2 * d}, 16, v{vX + d}\nv_and_b32 v{vE0 + 2 * d + 1}, {sHiM}, v{vX + d}')
    A(f'v_lshlrev_b32 v{vE0 + 8}, 16, v{vX + 4}')
    A(f'v_add_f32 v{vT}, v{vE0}, v{vE0 + 1}')
    for i in range(2, 9): A(f'v_add_f32 v{vT}, v{vT}, v{vE0 + i}')
    ALL = ['r1', 'r2', 'r4', 'r8', '16', '32']
    allred('v_add_f32', vT, vT + 1, ALL)
    A(f'v_mul_f32 v{vT}, {f32(1.0 / 576)}, v{vT}')
    A(f'v_mov_b32 v{vT + 2}, 0')
    for i in range(9):
        A(f'v_sub_f32 v{vT + 3 + (i & 1)}, v{vE0 + i}, v{vT}\nv_fmac_f32 v{vT + 2}, v{vT + 3 + (i & 1)}, v{vT + 3 + (i & 1)}')
    allred('v_add_f32', vT + 2, vT + 1, ALL)
    A(f'v_mul_f32 v{vT + 2}, {f32(1.0 / 576)}, v{vT + 2}')
    A(f'v_cvt_pk_bf16_f32 v{vT + 1}, v{vT}, v{vT + 2}\nv_lshlrev_b32 v{vT}, 16, v{vT + 1}\nv_and_b32 v{vT + 2}, {sHiM}, v{vT + 1}')
    A(f'v_add_f32 v{vT + 2}, {f32(1e-5)}, v{vT + 2}\nv_cvt_pk_bf16_f32 v{vT + 2}, v{vT + 2}, v{vT + 2}\nv_and_b32 v{vT + 2}, {sHiM}, v{vT + 2}')
    A(f'v_sqrt_f32 v{vT + 2}, v{vT + 2}')
    for i in range(9): A(f'v_sub_f32 v{vE0 + i}, v{vE0 + i}, v{vT}')
    A(f'v_cvt_pk_bf16_f32 v{vT + 2}, v{vT + 2}, v{vT + 2}\nv_and_b32 v{vT + 2}, {sHiM}, v{vT + 2}\nv_rcp_f32 v{vT + 2}, v{vT + 2}')
    for d in range(5): A(f'v_cvt_pk_bf16_f32 v{vX + d}, v{vE0 + 2 * d}, v{vE0 + min(2 * d + 1, 8)}')
    for d in range(4):
        A(f'v_lshlrev_b32 v{vE0 + 2 * d}, 16, v{vX + d}\nv_and_b32 v{vE0 + 2 * d + 1}, {sHiM}, v{vX + d}')
    A(f'v_lshlrev_b32 v{vE0 + 8}, 16, v{vX + 4}')
    for i in range(9): A(f'v_mul_f32 v{vE0 + i}, v{vE0 + i}, v{vT + 2}')
    for d in range(5): A(f'v_cvt_pk_bf16_f32 v{vX + d}, v{vE0 + 2 * d}, v{vE0 + min(2 * d + 1, 8)}')
    A(f'ds_write_b128 v{v16}, {V4(vX)} offset:{XN}\nds_write_b16 v{vS_}, v{vX + 4} offset:{XN + 1024}')
    A(f'v_mul_u32_u24 v{vU}, 36, v{vU}')
    for i in range(4):
        A(f'ds_read2_b32 v[{vXp + 2 * i}:{vXp + 2 * i + 1}], v{vU} offset0:{XN // 4 + 2 * i} offset1:{XN // 4 + 2 * i + 1}')
    A(f'ds_read_b32 v{vXp + 8}, v{vU} offset:{XN + 32}')
    A('s_waitcnt lgkmcnt(0)')
    mktag()
    for k in range(9):
        A(f's_waitcnt vmcnt({17 - 2 * k})')
        proj_pair(vWq + 8 * k, vWq + 8 * k + 4, vXp + k, vAc, vT)
    proj_reduce(vAc, True)
    A(f'v_cvt_pk_bf16_f32 v{vAc}, v{vAc}, v{vAc}\nv_mov_b32 v{vAc + 1}, {sTag}')
    A(f'v_lshrrev_b32 v{vU}, 3, v0\nv_lshl_add_u32 v{vU}, v5, 3, v{vU}\nv_lshlrev_b32 v{vU}, 3, v{vU}')
    A(f's_lshl_b32 {sOff}, {sA}, 7\ns_add_u32 {sOff}, {sOff}, {WS_Q}')
    A('s_mov_b32 exec_lo, 0x03030303\ns_mov_b32 exec_hi, 0x03030303')
    A(f'buffer_store_dwordx2 v[{vAc}:{vAc + 1}], v{vU}, {S(60)}, {sOff} offen {c["st"]}')
    A('s_mov_b64 exec, -1')
    stamp(1)
    A(f's_lshl_b32 {sOff}, {sH}, 11\ns_add_u32 {sOff}, {sOff}, {WS_Q}\nv_lshlrev_b32 v{vU}, 5, v0\ns_mov_b32 {sSpin}, 0')
    A('L_pollq:')
    A(f'buffer_load_dwordx4 {V4(vE0)}, v{vU}, {S(60)}, {sOff} offen {c["ld"]}')
    A(f'buffer_load_dwordx4 {V4(vE0 + 4)}, v{vU}, {S(60)}, {sOff} offen offset:16 {c["ld"]}')
    A(f's_add_u32 {sSpin}, {sSpin}, 1\ns_cmp_gt_u32 {sSpin}, 20000\ns_cbranch_scc1 L_q_done')
    A('s_waitcnt vmcnt(0)')
    A(f'v_cmp_ne_u32 s[52:53], {sTag}, v{vE0 + 1}\nv_cmp_ne_u32 s[54:55], {sTag}, v{vE0 + 3}\nv_cmp_ne_u32 s[56:57], {sTag}, v{vE0 + 5}\nv_cmp_ne_u32 vcc, {sTag}, v{vE0 + 7}')
    A('s_or_b64 s[52:53], s[52:53], s[54:55]\ns_or_b64 vcc, vcc, s[56:57]\ns_or_b64 vcc, vcc, s[52:53]\ns_cbranch_scc1 L_pollq')
    A('L_q_done:')
    A(f'v_perm_b32 v{vT}, v{vE0 + 2}, v{vE0}, {sSelLo}\nv_perm_b32 v{vT + 1}, v{vE0 + 6}, v{vE0 + 4}, {sSelLo}\nv_lshlrev_b32 v{vU}, 3, v0')
    A(f'ds_write_b64 v{vU}, v[{vT}:{vT + 1}] offset:{QL}')
    stamp(2)
    A('s_waitcnt lgkmcnt(0)\ns_barrier')
    vOo, vMLo, vPa, vPb, vOl = 2, 3, 4, 5, 12
    A(f'v_lshrrev_b32 v{vT}, 5, v0\nv_lshlrev_b32 v{vMLo}, 5, v{vT}')
    A(f'v_lshlrev_b32 v{vOo}, 9, v{vT}\nv_and_b32 v{vT + 1}, 15, v0\nv_lshl_add_u32 v{vOo}, v{vT + 1}, 5, v{vOo}\nv_and_b32 v{vT + 1}, 16, v0\nv_add_u32 v{vOo}, v{vOo}, v{vT + 1}')
    A(f'v_lshrrev_b32 v{vT}, 2, v0\nv_mul_u32_u24 v{vPb}, 1152, v{vT}\nv_and_b32 v{vT}, 3, v0\nv_lshl_add_u32 v{vPa}, v{vT}, 4, v{vPb}')
    A(f'v_lshrrev_b32 v{vT + 1}, 4, v0\nv_lshl_add_u32 v{vOl}, v{vT}, 2, v{vT + 1}\nv_lshlrev_b32 v{vOl}, 2, v{vOl}')
    A(f's_mul_i32 {sOff}, {sA}, 1152\ns_add_u32 {sOff}, {sOff}, {WS_O}')
    A(f's_mul_i32 {sT0}, {sH}, {16 * 1152}\ns_add_u32 {sT0}, {sT0}, {WS_O}\ns_lshr_b32 {sT1}, {sS}, 3\ns_lshl_b32 {sT1}, {sT1}, 4\ns_add_u32 {sT1}, {sT1}, {sT0}')
    A(f's_lshl_b32 s97, {sS}, 6\ns_add_u32 {sT0}, {sT0}, s97')
    A(f'v_mov_b32 v{vT}, 0\ns_mov_b32 {sSpin}, 0')
    A('L_spin:')
    A(f's_sleep 1\nds_read_b32 v{vT + 1}, v{vT} offset:{CNT}\ns_add_u32 {sSpin}, {sSpin}, 1\ns_cmp_gt_u32 {sSpin}, 200000\ns_cbranch_scc1 L_spin_done')
    A(f's_waitcnt lgkmcnt(0)\nv_cmp_gt_u32 vcc, 4, v{vT + 1}\ns_cbranch_vccnz L_spin')
    A('L_spin_done:')
    vMl, vOp = 16, 64
    A(f'ds_read_b128 {V4(vMl)}, v{vMLo} offset:{ML}\nds_read_b128 {V4(vMl + 4)}, v{vMLo} offset:{ML + 16}')
    for w in range(4): A(f'ds_read_b128 {V4(vOp + 4 * w)}, v{v16} offset:{OP + 1024 * w}')
    stamp(3)
    A('s_waitcnt lgkmcnt(0)')
    vG4 = 24
    A(f'v_max3_f32 v{vG4}, v{vMl}, v{vMl + 2}, v{vMl + 4}\nv_max_f32 v{vG4}, v{vG4}, v{vMl + 6}')
    for w in range(4): A(f'v_sub_f32 v{vMl + 2 * w}, v{vMl + 2 * w}, v{vG4}')
    for w in range(4): A(f'v_mul_f32 v{vMl + 2 * w}, {sL2E}, v{vMl + 2 * w}')
    for w in range(4): A(f'v_exp_f32 v{vMl + 2 * w}, v{vMl + 2 * w}')
    A(f'v_mov_b32 v{vG4 + 2}, {sTag}\nv_mov_b32 v{vG4 + 3}, {sTag}')
    for r in range(4): A(f'v_mul_f32 v{vOp + r}, v{vMl}, v{vOp + r}')
    for w in range(1, 4):
        for r in range(4): A(f'v_fmac_f32 v{vOp + r}, v{vMl + 2 * w}, v{vOp + 4 * w + r}')
    tagbytes(vOp)
    A(f'buffer_store_dwordx4 {V4(vOp)}, v{vOo}, {S(60)}, {sOff} offen {c["st"]}')
    A(f'v_mul_f32 v{vG4 + 1}, v{vMl}, v{vMl + 1}')
    for w in range(1, 4): A(f'v_fmac_f32 v{vG4 + 1}, v{vMl + 2 * w}, v{vMl + 2 * w + 1}')
    A(f'v_lshrrev_b32 v{vMLo}, 1, v{vMLo}')
    A('s_mov_b32 exec_lo, 1\ns_mov_b32 exec_hi, 1')
    A(f'buffer_store_dwordx4 {V4(vG4)}, v{vMLo}, {S(60)}, {sOff} offen offset:1024 {c["st"]}')
    A(f's_mov_b64 exec, -1\ns_mov_b32 {sSpin}, 0')
    stamp(4)
    vPO, vPM = 32, 36
    A('L_poll1:')
    A(f'buffer_load_dwordx4 {V4(vPO)}, v{vPa}, {S(60)}, {sT0} offen {c["ld"]}')
    A(f'buffer_load_dwordx4 {V4(vPM)}, v{vPb}, {S(60)}, {sT1} offen offset:1024 {c["ld"]}')
    A(f's_add_u32 {sSpin}, {sSpin}, 1\ns_cmp_gt_u32 {sSpin}, 20000\ns_cbranch_scc1 L_1_done')
    A('s_waitcnt vmcnt(0)')
    A(f'v_cmp_ne_u32 s[58:59], {sTag}, v{vPM + 2}')
    tagcheck(vPO, 56)
    A('s_or_b64 s[56:57], s[56:57], s[58:59]\ns_cbranch_scc1 L_poll1')
    A('L_1_done:')
    A(f'v_mov_b32 v{vT}, v{vPM}')
    for r in range(4): A(f'v_and_b32 v{vPO + r}, 0xffffff00, v{vPO + r}')
    allred('v_max_f32', vT, vT + 1, ['r4', 'r8', '16', '32'])
    A(f'v_sub_f32 v{vT}, v{vPM}, v{vT}\nv_mul_f32 v{vT}, {sL2E}, v{vT}\nv_exp_f32 v{vT}, v{vT}')
    A(f'v_mul_f32 v{vPM + 1}, v{vT}, v{vPM + 1}')
    for r in range(4): A(f'v_mul_f32 v{vPO + r}, v{vT}, v{vPO + r}')
    allred('v_add_f32', vPM + 1, vT + 1, ['r4', 'r8', '16', '32'])
    A(f'v_rcp_f32 v{vPM + 1}, v{vPM + 1}')

    def red4(r):
        A(f'v_permlane32_swap_b32 v{r}, v{r + 2}\nv_permlane32_swap_b32 v{r + 1}, v{r + 3}')
        A(f'v_add_f32 v{r}, v{r}, v{r + 2}\nv_add_f32 v{r + 1}, v{r + 1}, v{r + 3}')
        A(f'v_permlane16_swap_b32 v{r}, v{r + 1}\nv_add_f32 v{r}, v{r}, v{r + 1}')
    red4(vPO)
    allred('v_add_f32', vPO, vT + 1, ['r4', 'r8'])
    A(f'v_mul_f32 v{vPO}, v{vPO}, v{vPM + 1}\nv_cvt_pk_bf16_f32 v{vPO}, v{vPO}, v{vPO}')
    A(f'ds_write_b32 v{vOl}, v{vPO} offset:{OL}')
    stamp(5)
    A('s_waitcnt lgkmcnt(0)\ns_barrier')
    vYa, vYd = 2, 64
    A(f'v_mul_u32_u24 v{vYa}, {SP}, v0\ns_mul_i32 {sOff}, s2, {SR}\ns_add_u32 {sOff}, {sOff}, {WS_Y}')
    msk = [40, 42, 44, 46]
    so = [sOff, sT0, sT1, 's97']
    for u in range(1, 4): A(f's_add_u32 {so[u]}, {sOff}, {64 * SP * u}')
    for u in range(4): A(f's_mov_b64 s[{msk[u]}:{msk[u] + 1}], -1')
    A(f's_mov_b32 {sSpin}, 0')
    A('s_barrier')
    stamp(6)
    A('s_cmp_ge_u32 s2, 144\ns_cbranch_scc1 L_fin')
    A('L_poll2:')
    for u in range(4):
        A(f's_mov_b64 exec, s[{msk[u]}:{msk[u] + 1}]')
        A(f'buffer_load_dwordx4 {V4(vYd + 4 * u)}, v{vYa}, {S(60)}, {so[u]} offen {c["ld"]}')
    A('s_mov_b64 exec, -1')
    A(f's_add_u32 {sSpin}, {sSpin}, 1\ns_cmp_gt_u32 {sSpin}, 20000\ns_cbranch_scc1 L_2_done')
    for u in range(4):
        A(f's_waitcnt vmcnt({3 - u})')
        tagcheck(vYd + 4 * u, msk[u])
    A('s_or_b64 s[52:53], s[40:41], s[42:43]\ns_or_b64 s[54:55], s[44:45], s[46:47]\ns_or_b64 s[52:53], s[52:53], s[54:55]\ns_cbranch_scc1 L_poll2')
    A('L_2_done:')
    A(f's_mov_b32 {sT0}, 0xffffff00')
    for r in range(16): A(f'v_and_b32 v{vYd + r}, {sT0}, v{vYd + r}')
    for r in range(8): A(f'v_add_f32 v{vYd + r}, v{vYd + r}, v{vYd + 8 + r}')
    for r in range(4): A(f'v_add_f32 v{vYd + r}, v{vYd + r}, v{vYd + 4 + r}')
    red4(vYd)
    allred('v_add_f32', vYd, vT + 1, ['r1', 'r2', 'r4', 'r8'])
    A(f'v_lshlrev_b32 v7, 16, v7\nv_add_f32 v{vYd}, v{vYd}, v7\nv_cvt_pk_bf16_f32 v{vYd}, v{vYd}, v{vYd}')
    A('s_mov_b32 exec_lo, 0x00010001\ns_mov_b32 exec_hi, 0x00010001')
    A(f'buffer_store_short v{vYd}, v{vXo}, {S(48)}, 0 offen')
    A('s_cmp_lg_u32 s2, 0\ns_cbranch_scc1 L_fin')
    A(f's_mov_b64 exec, 1\nv_mov_b32 v{vT}, {sTag}\nbuffer_store_dword v{vT}, v0, {S(60)}, 0 offen')
    A('L_fin:')
    if stamps:
        stamp(7)
        store_stamps(0, 8, 0)
    A('L_end:\ns_endpgm')

    body = A.render()
    return (HEADER + f'; @launch grid=(256,1,1) block=(320,1,1) lds={LDS_BYTES}\n'
            '.amdgcn_target "amdgcn-amd-amdhsa--gfx950"\n.text\n'
            f'.globl {NAME}_kernel\n.p2align 8\n.type {NAME}_kernel,@function\n' + body +
            f'''.section .rodata,"a"
.p2align 6
.amdhsa_kernel {NAME}_kernel
  .amdhsa_next_free_vgpr 256
  .amdhsa_next_free_sgpr 102
  .amdhsa_accum_offset 256
  .amdhsa_group_segment_fixed_size 0
  .amdhsa_kernarg_size 96
  .amdhsa_user_sgpr_count 2
  .amdhsa_user_sgpr_kernarg_segment_ptr 1
  .amdhsa_system_sgpr_workgroup_id_x 1
.end_amdhsa_kernel
''')


if __name__ == '__main__':
    out = sys.argv[1]
    kw = {}
    for a in sys.argv[2:]:
        k, v = a.split('=', 1)
        kw[k] = int(v) if v.lstrip('-').isdigit() else v.replace('+', ' ')
    open(out, 'w').write(gen(**kw))
```

```python
import sys, os, struct
from asmlib import Asm

NAME = 'parallel_sum__gqa_block_cached__swiglu_ffn__decode'
HEADER = open(os.path.join(os.path.dirname(os.path.abspath(__file__)), 'header.txt')).read()


def f32(x):
    return '0x%08x' % struct.unpack('<I', struct.pack('<f', x))[0]


XN, QL, CNT, ML, OL, GUL, OP, LDS_BYTES = 0, 1280, 1792, 1824, 1920, 2048, 4096, 8192
WS_Q, WS_O, WS_Y, WS_STAMP = 4096, 65536, 1 << 20, 128 << 20
OOB = 0x40000000

DEF = dict(W=6, R=40, pol_kv='nt', pol_q='nt', pol_g='nt', pol_w='nt', ylay='pr', stamps=False,
           st='sc1', ld='sc1', WG=6, WW=6)


def gen(**kw):
    c = dict(DEF); c.update(kw)
    W, R, stamps = c['W'], c['R'], c['stamps']
    SP, SR = (2304, 16) if c['ylay'] == 'pr' else (16, 4096)
    A = Asm()
    sW, sA, sH, sS, sOff, sTag, sL2E, sScale, sSelLo, sSelHi, sHiM, sT0 = 's3', 's4', 's5', 's6', 's7', 's8', 's9', 's10', 's11', 's12', 's13', 's14'
    sT1, sSpin = 's15', 's96'
    pX, pK, pV, pWQ, pWO, pG, pU, pD, pOut, pWS = 16, 18, 20, 22, 24, 28, 30, 32, 34, 38
    nst = [0]

    def stamp(i):
        if stamps:
            A(f's_memrealtime s[{64 + 2 * i}:{65 + 2 * i}]')

    def srd(base, ptr, size):
        A(f's_mov_b32 s{base}, s{ptr}\ns_mov_b32 s{base + 1}, s{ptr + 1}\ns_mov_b32 s{base + 2}, {size:#x}\ns_mov_b32 s{base + 3}, 0x20000')

    def S(base):
        return f's[{base}:{base + 3}]'

    def V4(r):
        return f'v[{r}:{r + 3}]'

    def allred(op, v, t, steps):
        for st in steps:
            if st[0] == 'r':
                A(f'{op}_dpp v{v}, v{v}, v{v} row_ror:{st[1:]} row_mask:0xf bank_mask:0xf')
            else:
                A(f'v_mov_b32 v{t}, v{v}\nv_permlane{st}_swap_b32 v{v}, v{t}\n{op} v{v}, v{v}, v{t}')

    def proj_pair(ra, rb, xp, acc, t):
        for d in range(4):
            A(f'v_perm_b32 v{t + (2 * d) % 4}, v{rb + d}, v{ra + d}, {sSelLo}')
            A(f'v_perm_b32 v{t + (2 * d + 1) % 4}, v{rb + d}, v{ra + d}, {sSelHi}')
            A(f'v_dot2c_f32_bf16 v{acc + 2 * d}, v{t + (2 * d) % 4}, v{xp}')
            A(f'v_dot2c_f32_bf16 v{acc + 2 * d + 1}, v{t + (2 * d + 1) % 4}, v{xp}')

    def proj_reduce(acc, two_lane):
        for j in range(4):
            A(f'v_permlane32_swap_b32 v{acc + j}, v{acc + j + 4}')
        for j in range(4):
            A(f'v_add_f32 v{acc + j}, v{acc + j}, v{acc + j + 4}')
        for j in range(2):
            A(f'v_permlane16_swap_b32 v{acc + j}, v{acc + j + 2}')
        for j in range(2):
            A(f'v_add_f32 v{acc + j}, v{acc + j}, v{acc + j + 2}')
        for j in range(2):
            A(f'v_add_f32_dpp v{acc + j}, v{acc + j}, v{acc + j} row_ror:4 row_mask:0xf bank_mask:0xf')
        A(f'v_add_f32_dpp v{acc}, v{acc}, v{acc} row_ror:8 row_mask:0xf bank_mask:0xf')
        A(f'v_add_f32_dpp v{acc}, v{acc + 1}, v{acc + 1} row_ror:8 row_mask:0xf bank_mask:0xc')
        if two_lane:
            A(f'v_add_f32_dpp v{acc}, v{acc}, v{acc} quad_perm:[2,3,0,1] row_mask:0xf bank_mask:0xf')

    def tagbytes(r):
        for k in range(4):
            A(f'v_mov_b32_sdwa v{r + k}, {sTag} dst_sel:BYTE_0 dst_unused:UNUSED_PRESERVE src0_sel:BYTE_{k}')

    def tagcheck(r, dst):
        A(f'v_cmp_ne_u32_sdwa s[{dst}:{dst + 1}], v{r}, {sTag} src0_sel:BYTE_0 src1_sel:BYTE_0')
        A(f'v_cmp_ne_u32_sdwa s[52:53], v{r + 1}, {sTag} src0_sel:BYTE_0 src1_sel:BYTE_1')
        A(f'v_cmp_ne_u32_sdwa s[54:55], v{r + 2}, {sTag} src0_sel:BYTE_0 src1_sel:BYTE_2')
        A(f'v_cmp_ne_u32_sdwa vcc, v{r + 3}, {sTag} src0_sel:BYTE_0 src1_sel:BYTE_3')
        A(f's_or_b64 s[{dst}:{dst + 1}], s[{dst}:{dst + 1}], s[52:53]')
        A(f's_or_b64 s[54:55], s[54:55], vcc')
        A(f's_or_b64 s[{dst}:{dst + 1}], s[{dst}:{dst + 1}], s[54:55]')

    def mktag():
        A(f's_mul_i32 {sTag}, {sTag}, 1664525\ns_add_u32 {sTag}, {sTag}, 1013904223')

    def store_stamps(first, n, off):
        if not stamps:
            return
        A('s_waitcnt lgkmcnt(0)\ns_mov_b64 exec, 1')
        A(f's_lshl_b32 {sT0}, s2, 7\ns_add_u32 {sT0}, {sT0}, {WS_STAMP + off}\nv_mov_b32 v2, 0')
        for i in range(n):
            A(f'v_mov_b32 v4, s{64 + 2 * (first + i)}\nv_mov_b32 v5, s{65 + 2 * (first + i)}')
            A(f'buffer_store_dwordx2 v[4:5], v2, s[60:63], {sT0} offen offset:{8 * i}')

    A(f'{NAME}_kernel:')
    A('s_load_dwordx16 s[16:31], s[0:1], 0\ns_load_dwordx8 s[32:39], s[0:1], 64')
    A('s_cmp_ge_u32 s2, 256\ns_cbranch_scc1 L_end')
    A('v_lshrrev_b32 v1, 6, v0\nv_and_b32 v0, 63, v0')
    A(f's_and_b32 {sH}, s2, 7\ns_lshl_b32 {sH}, {sH}, 1\ns_bfe_u32 {sT0}, s2, 0x10003\ns_add_u32 {sH}, {sH}, {sT0}')
    A(f'v_readfirstlane_b32 {sW}, v1')
    A(f's_lshr_b32 {sS}, s2, 4\ns_lshl_b32 {sA}, {sH}, 4\ns_add_u32 {sA}, {sA}, {sS}')
    A(f's_cmp_eq_u32 {sW}, 4\ns_cbranch_scc1 L_P')

    vL, vK, vV, vG, vWo, vWo2, vY, vTmp = 0, 1, 2, 3, 4, 5, 6, 7
    vM, vLs, vMc, vE = 8, 9, 10, 11
    vTa, vTb, vPk, vT3 = 12, 13, 14, 15
    vMask, vQ, vO, vA = 16, 20, 24, 28
    vAcc, vD, vSc, vRing = 36, 44, 60, 92
    assert vRing + 4 * R <= 256
    stamp(8)
    A(f'v_and_b32 v{vK}, 15, v{vL}\nv_lshrrev_b32 v{vTmp}, 4, v{vL}\nv_lshlrev_b32 v{vK}, 6, v{vK}\nv_lshl_add_u32 v{vK}, v{vTmp}, 4, v{vK}')
    A(f's_lshl_b32 {sOff}, {sA}, 18\ns_lshl_b32 {sT0}, {sW}, 10\ns_add_u32 {sOff}, {sOff}, {sT0}')
    A('s_waitcnt lgkmcnt(0)')
    srd(40, pK, 64 << 20)

    def setup_rest():
        A(f's_load_dword {sTag}, s[{pWS}:{pWS + 1}], 0')
        srd(44, pV, 64 << 20)
        A(f's_bitcmp1_b32 {sW}, 0\ns_cselect_b32 s48, s{pU}, s{pG}\ns_cselect_b32 s49, s{pU + 1}, s{pG + 1}\ns_mov_b32 s50, {576 * 9216:#x}\ns_mov_b32 s51, 0x20000')
        srd(52, pWO, 4096 * 1152)
        srd(56, pD, 4608 * 1152)
        srd(60, pWS, 256 << 20)
        A(f's_mov_b32 {sL2E}, {f32(1.4426950408889634)}\ns_mov_b32 {sScale}, {f32(128 ** -0.5)}')
        A(f's_mov_b32 {sSelLo}, 0x05040100\ns_mov_b32 {sSelHi}, 0x07060302\ns_mov_b32 {sHiM}, 0xffff0000')
        A(f'v_lshlrev_b32 v{vV}, 4, v{vL}')
        A(f'v_and_b32 v{vTa}, 1, v{vL}\nv_lshlrev_b32 v{vTa}, 4, v{vTa}\nv_mov_b32 v{vTb}, 0xffff\nv_lshlrev_b32 v{vTb}, v{vTa}, v{vTb}')
        A(f'v_bfe_u32 v{vTa}, v{vL}, 1, 2')
        for r in range(4):
            A(f'v_cmp_eq_u32 vcc, {r}, v{vTa}\nv_cndmask_b32 v{vMask + r}, 0, v{vTb}, vcc')
        A(f'v_lshrrev_b32 v{vTa}, 2, v{vL}\nv_mul_u32_u24 v{vG}, {18 * 9216}, v{vTa}\nv_and_b32 v{vTa}, 3, v{vL}\nv_lshl_add_u32 v{vG}, v{vTa}, 4, v{vG}')
        A(f'v_mov_b32 v{vTb}, {OOB:#x}\nv_cmp_eq_u32 vcc, 3, v{vTa}\nv_cndmask_b32 v{vG}, v{vG}, v{vTb}, vcc')
        A(f'v_lshrrev_b32 v{vTa}, 3, v{vL}\nv_mul_u32_u24 v{vWo}, 1152, v{vTa}\nv_and_b32 v{vTa}, 7, v{vL}\nv_lshl_add_u32 v{vWo}, v{vTa}, 4, v{vWo}')
        A(f'v_cmp_lt_u32 vcc, 15, v{vL}\nv_cndmask_b32 v{vWo2}, v{vWo}, v{vTb}, vcc')
        A(f'v_bfe_u32 v{vPk}, v{vL}, 4, 1\nv_lshl_add_u32 v{vPk}, v{vTa}, 1, v{vPk}')
        A(f'v_lshrrev_b32 v{vTa}, 5, v{vL}\nv_lshl_add_u32 v{vTa}, v{vTa}, 2, {sW}')
        A(f'v_lshl_add_u32 v{vY}, v{vTa}, 4, v{vPk}\nv_mul_u32_u24 v{vY}, {SR}, v{vY}')
        A(f'v_add_u32 v{vPk}, 128, v{vPk}\nv_mul_u32_u24 v{vPk}, {SR}, v{vPk}')
        A(f'v_cmp_ne_u32 vcc, 0, v{vTa}\nv_cndmask_b32 v{vPk}, v{vPk}, v{vTb}, vcc')
        A(f'v_and_b32 v{vTa}, 8, v{vL}\nv_cmp_ne_u32 vcc, 0, v{vTa}\nv_cndmask_b32 v{vY}, v{vY}, v{vPk}, vcc')
        A(f'v_mov_b32 v{vM}, {f32(-3.0e38)}\nv_mov_b32 v{vLs}, 0')
        for r in range(4):
            A(f'v_mov_b32 v{vO + r}, 0')
        for r in range(8):
            A(f'v_mov_b32 v{vAcc + r}, 0')
        A(f'v_bfe_u32 v{vTa}, v{vL}, 3, 1\nv_lshlrev_b32 v{vTa}, 8, v{vTa}\nv_and_b32 v{vTb}, 3, v{vL}\nv_lshl_add_u32 v{vTa}, v{vTb}, 6, v{vTa}')
        A(f'v_lshrrev_b32 v{vTb}, 4, v{vL}\nv_lshl_add_u32 v{vTmp}, v{vTb}, 4, v{vTa}')

    loads = [('K', j) for j in range(64)] + [('V', j) for j in range(64)] + [('G', u) for u in range(18)] + \
            [('W', tt, rb) for tt in range(3) for rb in range(5)]
    N = len(loads)
    free = [vRing + 4 * i for i in range(R)]
    slot = {}

    def issue(t):
        ld = loads[t]
        r = free.pop(0); slot[t] = r
        if ld[0] in 'KV':
            if ld == ('V', 0):
                A(f's_sub_u32 {sOff}, {sOff}, {63 * 4096}')
            elif ld[1]:
                A(f's_addk_i32 {sOff}, 0x1000')
            A(f'buffer_load_dwordx4 {V4(r)}, v{vK if ld[0] == "K" else vV}, {S(40 if ld[0] == "K" else 44)}, {sOff} offen {c["pol_kv"]}')
        elif ld[0] == 'G':
            if ld[1] == 0:
                A(f's_mul_i32 {sOff}, {sA}, 36\ns_and_b32 {sOff}, {sOff}, -16\ns_lshr_b32 {sT0}, {sW}, 1\ns_mul_i32 {sT0}, {sT0}, {288 * 9216}\ns_add_u32 {sOff}, {sOff}, {sT0}')
            else:
                A(f's_addk_i32 {sOff}, 9216')
            A(f'buffer_load_dwordx4 {V4(r)}, v{vG}, {S(48)}, {sOff} offen {c["pol_g"]}')
        else:
            _, tt, rb = ld
            if (tt, rb) == (0, 0):
                A(f's_lshl_b32 {sT0}, {sW}, 7\ns_mul_i32 s97, {sA}, 18432\ns_add_u32 s97, s97, {sT0}\ns_mul_i32 s98, {sA}, 20736\ns_add_u32 s98, s98, {sT0}')
            if (tt, rb) == (2, 0):
                A(f's_cmp_eq_u32 {sW}, 0\ns_cselect_b32 s97, s97, {OOB:#x}\ns_cselect_b32 s98, s98, {OOB:#x}')
            base, k, sr = ('s97', rb, 52) if rb < 2 else ('s98', rb - 2, 56)
            so = base
            if k:
                A(f's_add_u32 {sT0}, {base}, {9216 * k}'); so = sT0
            A(f'buffer_load_dwordx4 {V4(r)}, v{vWo2 if rb == 4 else vWo}, {S(sr)}, {so} offen offset:{512 * tt} {c["pol_w"]}')

    def kmfma(t, d):
        A(f'v_mfma_f32_16x16x32_bf16 {V4(d)}, {V4(slot[t])}, {V4(vQ)}, 0')
        free.append(slot[t])

    def kpair(k):
        cur = vD + 8 * (k & 1); prv = vD + 8 * ((k - 1) & 1)
        if k == 0:
            kmfma(0, cur); kmfma(1, cur + 4); return
        for r in range(4):
            for tv, d in ((vTa, prv), (vTb, prv + 4)):
                qp = f'quad_perm:[{r},{r},{r},{r}] row_mask:0xf bank_mask:0xf'
                if r == 0: A(f'v_mov_b32_dpp v{tv}, v{d} {qp}')
                else: A(f'v_add_f32_dpp v{tv}, v{d + r}, v{tv} {qp}')
            if k < 32 and r < 2:
                kmfma(2 * k + r, cur + 4 * r)
        A(f'v_max3_f32 v{vM}, v{vTa}, v{vTb}, v{vM}\nv_cvt_pk_bf16_f32 v{vPk}, v{vTa}, v{vTb}')
        A(f'v_lshlrev_b32 v{vTa}, 16, v{vPk}\nv_and_b32 v{vTb}, {sHiM}, v{vPk}\nv_mul_f32 v{vTa}, {sScale}, v{vTa}\nv_mul_f32 v{vTb}, {sScale}, v{vTb}')
        A(f'v_cvt_pk_bf16_f32 v{vSc + k - 1}, v{vTa}, v{vTb}')

    def vprep(j):
        a = vA + 4 * (j & 1)
        if j & 1: A(f'v_and_b32 v{vE}, {sHiM}, v{vSc + j // 2}')
        else: A(f'v_lshlrev_b32 v{vE}, 16, v{vSc + j // 2}')
        A(f'v_fma_f32 v{vE}, v{vE}, {sL2E}, -v{vMc}\nv_exp_f32 v{vE}, v{vE}')
        A(f'v_cvt_pk_bf16_f32 v{vPk}, v{vE}, v{vE}\nv_add_f32 v{vLs}, v{vLs}, v{vE}')
        for r in range(4):
            A(f'v_and_b32 v{a + r}, v{vMask + r}, v{vPk}')

    def mfin():
        kpair(32)
        allred('v_max_f32', vM, vTa, ['32', '16'])
        A(f'v_cvt_pk_bf16_f32 v{vPk}, v{vM}, v{vM}\nv_lshlrev_b32 v{vM}, 16, v{vPk}\nv_mul_f32 v{vM}, {sScale}, v{vM}')
        A(f'v_cvt_pk_bf16_f32 v{vPk}, v{vM}, v{vM}\nv_lshlrev_b32 v{vM}, 16, v{vPk}\nv_mul_f32 v{vMc}, {sL2E}, v{vM}')
        stamp(11)
        A(f'v_lshrrev_b32 v{vTa}, 2, v{vL}\nv_mul_u32_u24 v{vTa}, 36, v{vTa}\ns_lshr_b32 {sT0}, {sW}, 1\ns_mul_i32 {sT0}, {sT0}, 576\nv_add_u32 v{vTa}, {sT0}, v{vTa}')
        for i in range(4):
            A(f'ds_read2_b32 v[{vD + 2 * i}:{vD + 2 * i + 1}], v{vTa} offset0:{XN // 4 + 2 * i} offset1:{XN // 4 + 2 * i + 1}')
        A(f'ds_read_b32 v{vD + 8}, v{vTa} offset:{XN + 32}')
        vprep(0)

    def vtile(j):
        t = 64 + j
        A(f'v_mfma_f32_16x16x32_bf16 {V4(vO)}, {V4(vA + 4 * (j & 1))}, {V4(slot[t])}, {V4(vO)}')
        free.append(slot[t])
        if j < 63:
            vprep(j + 1)
        if j == 62:
            allred('v_add_f32', vLs, vTa, ['32', '16'])
            A(f'v_lshlrev_b32 v{vTa}, 2, v{vL}\ns_lshl_b32 {sT0}, {sW}, 3\nv_add_u32 v{vTa}, {sT0}, v{vTa}')
            A(f's_mov_b64 exec, 0x101\nds_write_b64 v{vTa}, v[{vM}:{vM + 1}] offset:{ML}\ns_mov_b64 exec, -1')
            A(f's_lshl_b32 {sT0}, {sW}, 10\nv_add_u32 v{vTa}, {sT0}, v{vV}\nv_mov_b32 v{vTb}, 1')
        if j == 63:
            A(f'ds_write_b128 v{vTa}, {V4(vO)} offset:{OP}')
            A(f's_mov_b64 exec, 1\nds_add_u32 v{vL}, v{vTb} offset:{CNT}\ns_mov_b64 exec, -1')
            stamp(12)

    def gpair(k):
        if k == 0: A('s_waitcnt lgkmcnt(0)')
        ta, tb = 128 + 2 * k, 129 + 2 * k
        proj_pair(slot[ta], slot[tb], vD + k, vAcc, vTa)
        free.append(slot[ta]); free.append(slot[tb])

    tasks = [(2 * k + 1, 2, (lambda k=k: kpair(k))) for k in range(32)]
    tasks += [(63, 2, mfin)]
    tasks += [(64 + j, 1, (lambda j=j: vtile(j))) for j in range(64)]
    tasks += [(129 + 2 * k, 2, (lambda k=k: gpair(k))) for k in range(9)]
    ti = 0
    landed = -1
    for t in range(N):
        win = W if t < 128 else (c['WG'] if t < 146 else c['WW'])
        if t - win > landed:
            A(f's_waitcnt vmcnt({win - 1})'); landed = t - win
        issue(t)
        if t == W - 1:
            setup_rest()
        if t == R - 1:
            stamp(9)
            A('s_waitcnt lgkmcnt(0)\ns_barrier')
            A(f'ds_read_b128 {V4(vQ)}, v{vTmp} offset:{QL}')
            mktag()
            stamp(10)
            A('s_waitcnt lgkmcnt(0)')
        if t >= R - 1:
            budget = 2
            while ti < len(tasks) and budget > 0 and tasks[ti][0] <= landed:
                budget -= tasks[ti][1]; tasks[ti][2](); ti += 1
    while ti < len(tasks):
        if tasks[ti][0] > landed:
            landed = tasks[ti][0]
            A(f's_waitcnt vmcnt({N - 1 - landed})')
        tasks[ti][2](); ti += 1
    proj_reduce(vAcc, False)
    A(f'v_and_b32 v{vTa}, 3, v{vL}\nv_lshrrev_b32 v{vTb}, 3, v{vL}\nv_lshl_add_u32 v{vTa}, v{vTa}, 3, v{vTb}\ns_lshl_b32 {sT0}, {sW}, 5\nv_add_lshl_u32 v{vTa}, v{vTa}, {sT0}, 2')
    A(f'ds_write_b32 v{vTa}, v{vAcc} offset:{GUL}')
    A(f's_and_b32 {sT0}, {sA}, 3\ns_lshl_b32 {sT0}, {sT0}, 1\nv_add_lshl_u32 v{vTa}, v{vTb}, {sT0}, 2\nv_add_u32 v{vTa}, {GUL}, v{vTa}\nv_lshlrev_b32 v{vTb}, 2, v{vTb}')
    stamp(13)
    A('s_waitcnt lgkmcnt(0)\ns_barrier')
    for rb in range(3):
        A(f'ds_read2_b32 v[{vD + 4 * rb}:{vD + 4 * rb + 1}], v{vTa} offset0:{8 * rb} offset1:{64 + 8 * rb}')
        A(f'ds_read2_b32 v[{vD + 4 * rb + 2}:{vD + 4 * rb + 3}], v{vTa} offset0:{32 + 8 * rb} offset1:{96 + 8 * rb}')
    A(f'ds_read_b32 v{vD + 12}, v{vTb} offset:{OL}\nds_read_b32 v{vD + 13}, v{vTb} offset:{OL + 32}')
    vC, vDt = vSc, vSc + 20
    A(f's_mul_i32 {sOff}, {sA}, {SP}\ns_add_u32 {sOff}, {sOff}, {WS_Y}')
    A('s_waitcnt lgkmcnt(0)')
    g = [vD + 4 * rb for rb in range(3)]
    for x in g: A(f'v_add_f32 v{x}, v{x}, v{x + 1}\nv_add_f32 v{x + 2}, v{x + 2}, v{x + 3}')
    for x in g: A(f'v_cvt_pk_bf16_f32 v{x + 1}, v{x}, v{x + 2}')
    for x in g: A(f'v_lshlrev_b32 v{x}, 16, v{x + 1}\nv_and_b32 v{x + 2}, {sHiM}, v{x + 1}')
    for x in g: A(f'v_mul_f32 v{x + 1}, {sL2E}, v{x}')
    for x in g: A(f'v_exp_f32 v{x + 1}, -v{x + 1}')
    for x in g: A(f'v_add_f32 v{x + 1}, 1.0, v{x + 1}')
    for x in g: A(f'v_rcp_f32 v{x + 1}, v{x + 1}')
    for x in g: A(f'v_mul_f32 v{x}, v{x}, v{x + 1}')
    for x in g: A(f'v_cvt_pk_bf16_f32 v{x}, v{x}, v{x}')
    for x in g: A(f'v_and_b32 v{x}, {sHiM}, v{x}')
    for x in g: A(f'v_mul_f32 v{x}, v{x}, v{x + 2}')
    for x in g: A(f'v_cvt_pk_bf16_f32 v{x}, v{x}, v{x}')
    src = [vD + 12, vD + 13] + g
    for rb in range(5):
        for r in range(4):
            A(f'v_and_b32 v{vC + 4 * rb + r}, v{vMask + r}, v{src[rb]}')
    for tt in range(3):
        for rb in range(5):
            t = 146 + 5 * tt + rb
            if t > landed:
                A(f's_waitcnt vmcnt({N - 1 - t})'); landed = t
            d = vDt + 4 * tt
            A(f'v_mfma_f32_16x16x32_bf16 {V4(d)}, {V4(vC + 4 * rb)}, {V4(slot[t])}, {V4(d) if rb else 0}')
    stamp(14)
    for r in range(4): A(f'v_permlane32_swap_b32 v{vDt + r}, v{vDt + 4 + r}')
    for r in range(4): A(f'v_permlane32_swap_b32 v{vDt + 8 + r}, v{vD + r}')
    for r in range(4): A(f'v_add_f32_dpp v{vDt + r}, v{vDt + 4 + r}, v{vDt + r} row_ror:8 row_mask:0xf bank_mask:0xf')
    for r in range(4): A(f'v_add_f32_dpp v{vDt + r}, v{vDt + 8 + r}, v{vD + r} row_ror:8 row_mask:0xf bank_mask:0xc')
    tagbytes(vDt)
    A(f'buffer_store_dwordx4 {V4(vDt)}, v{vY}, {S(60)}, {sOff} offen {c["st"]}')
    A('s_barrier')
    if stamps:
        stamp(15)
        A(f's_cmp_lg_u32 {sW}, 0\ns_cbranch_scc1 L_end')
        store_stamps(8, 8, 64)
    A('s_endpgm')

    A('L_P:')
    stamp(0)
    vX, vE0, vWq, vAc, vXp, vT = 8, 16, 64, 28, 36, 48
    v16, vQo, vS_, vU, vXo = 1, 2, 3, 4, 6
    A('s_setprio 2')
    A(f'v_lshlrev_b32 v{v16}, 4, v0\nv_lshlrev_b32 v{vS_}, 1, v0')
    A(f'v_lshrrev_b32 v{vU}, 1, v0\nv_mul_u32_u24 v{vQo}, {18 * 8192}, v{vU}\nv_and_b32 v5, 1, v0\nv_lshl_add_u32 v{vQo}, v5, 4, v{vQo}')
    A(f's_lshl_b32 {sOff}, {sA}, 5')
    A('s_waitcnt lgkmcnt(0)')
    srd(40, pX, 1152)
    srd(44, pWQ, 576 * 8192)
    A(f'buffer_load_dwordx4 {V4(vX)}, v{v16}, {S(40)}, 0 offen')
    A(f'buffer_load_ushort v{vX + 4}, v{vS_}, {S(40)}, 0 offen offset:1024')
    A(f's_load_dword {sTag}, s[{pWS}:{pWS + 1}], 0')
    for u in range(18):
        if u: A(f's_addk_i32 {sOff}, 8192')
        A(f'buffer_load_dwordx4 {V4(vWq + 4 * u)}, v{vQo}, {S(44)}, {sOff} offen {c["pol_q"]}')
    A(f'v_lshrrev_b32 v{vXo}, 4, v0\nv_lshl_add_u32 v{vXo}, s2, 2, v{vXo}\nv_lshlrev_b32 v{vXo}, 1, v{vXo}')
    A(f'buffer_load_ushort v7, v{vXo}, {S(40)}, 0 offen')
    srd(60, pWS, 256 << 20)
    srd(48, pOut, 1152)
    A(f's_mov_b32 {sL2E}, {f32(1.4426950408889634)}')
    A(f's_mov_b32 {sSelLo}, 0x05040100\ns_mov_b32 {sSelHi}, 0x07060302\ns_mov_b32 {sHiM}, 0xffff0000')
    A(f'v_mov_b32 v{vT}, 0\nds_write_b32 v{vT}, v{vT} offset:{CNT}')
    for r in range(8): A(f'v_mov_b32 v{vAc + r}, 0')
    A('s_waitcnt vmcnt(19)')
    for d in range(4):
        A(f'v_lshlrev_b32 v{vE0 + 2 * d}, 16, v{vX + d}\nv_and_b32 v{vE0 + 2 * d + 1}, {sHiM}, v{vX + d}')
    A(f'v_lshlrev_b32 v{vE0 + 8}, 16, v{vX + 4}')
    A(f'v_add_f32 v{vT}, v{vE0}, v{vE0 + 1}')
    for i in range(2, 9): A(f'v_add_f32 v{vT}, v{vT}, v{vE0 + i}')
    ALL = ['r1', 'r2', 'r4', 'r8', '16', '32']
    allred('v_add_f32', vT, vT + 1, ALL)
    A(f'v_mul_f32 v{vT}, {f32(1.0 / 576)}, v{vT}')
    A(f'v_mov_b32 v{vT + 2}, 0')
    for i in range(9):
        A(f'v_sub_f32 v{vT + 3 + (i & 1)}, v{vE0 + i}, v{vT}\nv_fmac_f32 v{vT + 2}, v{vT + 3 + (i & 1)}, v{vT + 3 + (i & 1)}')
    allred('v_add_f32', vT + 2, vT + 1, ALL)
    A(f'v_mul_f32 v{vT + 2}, {f32(1.0 / 576)}, v{vT + 2}')
    A(f'v_cvt_pk_bf16_f32 v{vT + 1}, v{vT}, v{vT + 2}\nv_lshlrev_b32 v{vT}, 16, v{vT + 1}\nv_and_b32 v{vT + 2}, {sHiM}, v{vT + 1}')
    A(f'v_add_f32 v{vT + 2}, {f32(1e-5)}, v{vT + 2}\nv_cvt_pk_bf16_f32 v{vT + 2}, v{vT + 2}, v{vT + 2}\nv_and_b32 v{vT + 2}, {sHiM}, v{vT + 2}')
    A(f'v_sqrt_f32 v{vT + 2}, v{vT + 2}')
    for i in range(9): A(f'v_sub_f32 v{vE0 + i}, v{vE0 + i}, v{vT}')
    A(f'v_cvt_pk_bf16_f32 v{vT + 2}, v{vT + 2}, v{vT + 2}\nv_and_b32 v{vT + 2}, {sHiM}, v{vT + 2}\nv_rcp_f32 v{vT + 2}, v{vT + 2}')
    for d in range(5): A(f'v_cvt_pk_bf16_f32 v{vX + d}, v{vE0 + 2 * d}, v{vE0 + min(2 * d + 1, 8)}')
    for d in range(4):
        A(f'v_lshlrev_b32 v{vE0 + 2 * d}, 16, v{vX + d}\nv_and_b32 v{vE0 + 2 * d + 1}, {sHiM}, v{vX + d}')
    A(f'v_lshlrev_b32 v{vE0 + 8}, 16, v{vX + 4}')
    for i in range(9): A(f'v_mul_f32 v{vE0 + i}, v{vE0 + i}, v{vT + 2}')
    for d in range(5): A(f'v_cvt_pk_bf16_f32 v{vX + d}, v{vE0 + 2 * d}, v{vE0 + min(2 * d + 1, 8)}')
    A(f'ds_write_b128 v{v16}, {V4(vX)} offset:{XN}\nds_write_b16 v{vS_}, v{vX + 4} offset:{XN + 1024}')
    A(f'v_mul_u32_u24 v{vU}, 36, v{vU}')
    for i in range(4):
        A(f'ds_read2_b32 v[{vXp + 2 * i}:{vXp + 2 * i + 1}], v{vU} offset0:{XN // 4 + 2 * i} offset1:{XN // 4 + 2 * i + 1}')
    A(f'ds_read_b32 v{vXp + 8}, v{vU} offset:{XN + 32}')
    A('s_waitcnt lgkmcnt(0)')
    mktag()
    for k in range(9):
        A(f's_waitcnt vmcnt({17 - 2 * k})')
        proj_pair(vWq + 8 * k, vWq + 8 * k + 4, vXp + k, vAc, vT)
    proj_reduce(vAc, True)
    A(f'v_cvt_pk_bf16_f32 v{vAc}, v{vAc}, v{vAc}\nv_mov_b32 v{vAc + 1}, {sTag}')
    A(f'v_lshrrev_b32 v{vU}, 3, v0\nv_lshl_add_u32 v{vU}, v5, 3, v{vU}\nv_lshlrev_b32 v{vU}, 3, v{vU}')
    A(f's_lshl_b32 {sOff}, {sA}, 7\ns_add_u32 {sOff}, {sOff}, {WS_Q}')
    A('s_mov_b32 exec_lo, 0x03030303\ns_mov_b32 exec_hi, 0x03030303')
    A(f'buffer_store_dwordx2 v[{vAc}:{vAc + 1}], v{vU}, {S(60)}, {sOff} offen {c["st"]}')
    A('s_mov_b64 exec, -1')
    stamp(1)
    A(f's_lshl_b32 {sOff}, {sH}, 11\ns_add_u32 {sOff}, {sOff}, {WS_Q}\nv_lshlrev_b32 v{vU}, 5, v0\ns_mov_b32 {sSpin}, 0')
    A('L_pollq:')
    A(f'buffer_load_dwordx4 {V4(vE0)}, v{vU}, {S(60)}, {sOff} offen {c["ld"]}')
    A(f'buffer_load_dwordx4 {V4(vE0 + 4)}, v{vU}, {S(60)}, {sOff} offen offset:16 {c["ld"]}')
    A(f's_add_u32 {sSpin}, {sSpin}, 1\ns_cmp_gt_u32 {sSpin}, 20000\ns_cbranch_scc1 L_q_done')
    A('s_waitcnt vmcnt(0)')
    A(f'v_cmp_ne_u32 s[52:53], {sTag}, v{vE0 + 1}\nv_cmp_ne_u32 s[54:55], {sTag}, v{vE0 + 3}\nv_cmp_ne_u32 s[56:57], {sTag}, v{vE0 + 5}\nv_cmp_ne_u32 vcc, {sTag}, v{vE0 + 7}')
    A('s_or_b64 s[52:53], s[52:53], s[54:55]\ns_or_b64 vcc, vcc, s[56:57]\ns_or_b64 vcc, vcc, s[52:53]\ns_cbranch_scc1 L_pollq')
    A('L_q_done:')
    A(f'v_perm_b32 v{vT}, v{vE0 + 2}, v{vE0}, {sSelLo}\nv_perm_b32 v{vT + 1}, v{vE0 + 6}, v{vE0 + 4}, {sSelLo}\nv_lshlrev_b32 v{vU}, 3, v0')
    A(f'ds_write_b64 v{vU}, v[{vT}:{vT + 1}] offset:{QL}')
    stamp(2)
    A('s_waitcnt lgkmcnt(0)\ns_barrier')
    vOo, vMLo, vPa, vPb, vOl = 2, 3, 4, 5, 12
    A(f'v_lshrrev_b32 v{vT}, 5, v0\nv_lshlrev_b32 v{vMLo}, 5, v{vT}')
    A(f'v_lshlrev_b32 v{vOo}, 9, v{vT}\nv_and_b32 v{vT + 1}, 15, v0\nv_lshl_add_u32 v{vOo}, v{vT + 1}, 5, v{vOo}\nv_and_b32 v{vT + 1}, 16, v0\nv_add_u32 v{vOo}, v{vOo}, v{vT + 1}')
    A(f'v_lshrrev_b32 v{vT}, 2, v0\nv_mul_u32_u24 v{vPb}, 1152, v{vT}\nv_and_b32 v{vT}, 3, v0\nv_lshl_add_u32 v{vPa}, v{vT}, 4, v{vPb}')
    A(f'v_lshrrev_b32 v{vT + 1}, 4, v0\nv_lshl_add_u32 v{vOl}, v{vT}, 2, v{vT + 1}\nv_lshlrev_b32 v{vOl}, 2, v{vOl}')
    A(f's_mul_i32 {sOff}, {sA}, 1152\ns_add_u32 {sOff}, {sOff}, {WS_O}')
    A(f's_mul_i32 {sT0}, {sH}, {16 * 1152}\ns_add_u32 {sT0}, {sT0}, {WS_O}\ns_lshr_b32 {sT1}, {sS}, 3\ns_lshl_b32 {sT1}, {sT1}, 4\ns_add_u32 {sT1}, {sT1}, {sT0}')
    A(f's_lshl_b32 s97, {sS}, 6\ns_add_u32 {sT0}, {sT0}, s97')
    A(f'v_mov_b32 v{vT}, 0\ns_mov_b32 {sSpin}, 0')
    A('L_spin:')
    A(f's_sleep 1\nds_read_b32 v{vT + 1}, v{vT} offset:{CNT}\ns_add_u32 {sSpin}, {sSpin}, 1\ns_cmp_gt_u32 {sSpin}, 200000\ns_cbranch_scc1 L_spin_done')
    A(f's_waitcnt lgkmcnt(0)\nv_cmp_gt_u32 vcc, 4, v{vT + 1}\ns_cbranch_vccnz L_spin')
    A('L_spin_done:')
    vMl, vOp = 16, 64
    A(f'ds_read_b128 {V4(vMl)}, v{vMLo} offset:{ML}\nds_read_b128 {V4(vMl + 4)}, v{vMLo} offset:{ML + 16}')
    for w in range(4): A(f'ds_read_b128 {V4(vOp + 4 * w)}, v{v16} offset:{OP + 1024 * w}')
    stamp(3)
    A('s_waitcnt lgkmcnt(0)')
    vG4 = 24
    A(f'v_max3_f32 v{vG4}, v{vMl}, v{vMl + 2}, v{vMl + 4}\nv_max_f32 v{vG4}, v{vG4}, v{vMl + 6}')
    for w in range(4): A(f'v_sub_f32 v{vMl + 2 * w}, v{vMl + 2 * w}, v{vG4}')
    for w in range(4): A(f'v_mul_f32 v{vMl + 2 * w}, {sL2E}, v{vMl + 2 * w}')
    for w in range(4): A(f'v_exp_f32 v{vMl + 2 * w}, v{vMl + 2 * w}')
    A(f'v_mov_b32 v{vG4 + 2}, {sTag}\nv_mov_b32 v{vG4 + 3}, {sTag}')
    for r in range(4): A(f'v_mul_f32 v{vOp + r}, v{vMl}, v{vOp + r}')
    for w in range(1, 4):
        for r in range(4): A(f'v_fmac_f32 v{vOp + r}, v{vMl + 2 * w}, v{vOp + 4 * w + r}')
    tagbytes(vOp)
    A(f'buffer_store_dwordx4 {V4(vOp)}, v{vOo}, {S(60)}, {sOff} offen {c["st"]}')
    A(f'v_mul_f32 v{vG4 + 1}, v{vMl}, v{vMl + 1}')
    for w in range(1, 4): A(f'v_fmac_f32 v{vG4 + 1}, v{vMl + 2 * w}, v{vMl + 2 * w + 1}')
    A(f'v_lshrrev_b32 v{vMLo}, 1, v{vMLo}')
    A('s_mov_b32 exec_lo, 1\ns_mov_b32 exec_hi, 1')
    A(f'buffer_store_dwordx4 {V4(vG4)}, v{vMLo}, {S(60)}, {sOff} offen offset:1024 {c["st"]}')
    A(f's_mov_b64 exec, -1\ns_mov_b32 {sSpin}, 0')
    stamp(4)
    vPO, vPM = 32, 36
    A('L_poll1:')
    A(f'buffer_load_dwordx4 {V4(vPO)}, v{vPa}, {S(60)}, {sT0} offen {c["ld"]}')
    A(f'buffer_load_dwordx4 {V4(vPM)}, v{vPb}, {S(60)}, {sT1} offen offset:1024 {c["ld"]}')
    A(f's_add_u32 {sSpin}, {sSpin}, 1\ns_cmp_gt_u32 {sSpin}, 20000\ns_cbranch_scc1 L_1_done')
    A('s_waitcnt vmcnt(0)')
    A(f'v_cmp_ne_u32 s[58:59], {sTag}, v{vPM + 2}')
    tagcheck(vPO, 56)
    A('s_or_b64 s[56:57], s[56:57], s[58:59]\ns_cbranch_scc1 L_poll1')
    A('L_1_done:')
    A(f'v_mov_b32 v{vT}, v{vPM}')
    for r in range(4): A(f'v_and_b32 v{vPO + r}, 0xffffff00, v{vPO + r}')
    allred('v_max_f32', vT, vT + 1, ['r4', 'r8', '16', '32'])
    A(f'v_sub_f32 v{vT}, v{vPM}, v{vT}\nv_mul_f32 v{vT}, {sL2E}, v{vT}\nv_exp_f32 v{vT}, v{vT}')
    A(f'v_mul_f32 v{vPM + 1}, v{vT}, v{vPM + 1}')
    for r in range(4): A(f'v_mul_f32 v{vPO + r}, v{vT}, v{vPO + r}')
    allred('v_add_f32', vPM + 1, vT + 1, ['r4', 'r8', '16', '32'])
    A(f'v_rcp_f32 v{vPM + 1}, v{vPM + 1}')

    def red4(r):
        A(f'v_permlane32_swap_b32 v{r}, v{r + 2}\nv_permlane32_swap_b32 v{r + 1}, v{r + 3}')
        A(f'v_add_f32 v{r}, v{r}, v{r + 2}\nv_add_f32 v{r + 1}, v{r + 1}, v{r + 3}')
        A(f'v_permlane16_swap_b32 v{r}, v{r + 1}\nv_add_f32 v{r}, v{r}, v{r + 1}')
    red4(vPO)
    allred('v_add_f32', vPO, vT + 1, ['r4', 'r8'])
    A(f'v_mul_f32 v{vPO}, v{vPO}, v{vPM + 1}\nv_cvt_pk_bf16_f32 v{vPO}, v{vPO}, v{vPO}')
    A(f'ds_write_b32 v{vOl}, v{vPO} offset:{OL}')
    stamp(5)
    A('s_waitcnt lgkmcnt(0)\ns_barrier')
    vYa, vYd = 2, 64
    A(f'v_mul_u32_u24 v{vYa}, {SP}, v0\ns_mul_i32 {sOff}, s2, {SR}\ns_add_u32 {sOff}, {sOff}, {WS_Y}')
    msk = [40, 42, 44, 46]
    so = [sOff, sT0, sT1, 's97']
    for u in range(1, 4): A(f's_add_u32 {so[u]}, {sOff}, {64 * SP * u}')
    for u in range(4): A(f's_mov_b64 s[{msk[u]}:{msk[u] + 1}], -1')
    A(f's_mov_b32 {sSpin}, 0')
    A('s_barrier')
    stamp(6)
    A('s_cmp_ge_u32 s2, 144\ns_cbranch_scc1 L_fin')
    A('L_poll2:')
    for u in range(4):
        A(f's_mov_b64 exec, s[{msk[u]}:{msk[u] + 1}]')
        A(f'buffer_load_dwordx4 {V4(vYd + 4 * u)}, v{vYa}, {S(60)}, {so[u]} offen {c["ld"]}')
    A('s_mov_b64 exec, -1')
    A(f's_add_u32 {sSpin}, {sSpin}, 1\ns_cmp_gt_u32 {sSpin}, 20000\ns_cbranch_scc1 L_2_done')
    for u in range(4):
        A(f's_waitcnt vmcnt({3 - u})')
        tagcheck(vYd + 4 * u, msk[u])
    A('s_or_b64 s[52:53], s[40:41], s[42:43]\ns_or_b64 s[54:55], s[44:45], s[46:47]\ns_or_b64 s[52:53], s[52:53], s[54:55]\ns_cbranch_scc1 L_poll2')
    A('L_2_done:')
    A(f's_mov_b32 {sT0}, 0xffffff00')
    for r in range(16): A(f'v_and_b32 v{vYd + r}, {sT0}, v{vYd + r}')
    for r in range(8): A(f'v_add_f32 v{vYd + r}, v{vYd + r}, v{vYd + 8 + r}')
    for r in range(4): A(f'v_add_f32 v{vYd + r}, v{vYd + r}, v{vYd + 4 + r}')
    red4(vYd)
    allred('v_add_f32', vYd, vT + 1, ['r1', 'r2', 'r4', 'r8'])
    A(f'v_lshlrev_b32 v7, 16, v7\nv_add_f32 v{vYd}, v{vYd}, v7\nv_cvt_pk_bf16_f32 v{vYd}, v{vYd}, v{vYd}')
    A('s_mov_b32 exec_lo, 0x00010001\ns_mov_b32 exec_hi, 0x00010001')
    A(f'buffer_store_short v{vYd}, v{vXo}, {S(48)}, 0 offen')
    A('s_cmp_lg_u32 s2, 0\ns_cbranch_scc1 L_fin')
    A(f's_mov_b64 exec, 1\nv_mov_b32 v{vT}, {sTag}\nbuffer_store_dword v{vT}, v0, {S(60)}, 0 offen')
    A('L_fin:')
    if stamps:
        stamp(7)
        if c.get('diag') is not None:
            j = c['diag']
            A('s_waitcnt lgkmcnt(0)')
            A(f's_sub_u32 s14, s{64 + 2 * j}, s64\ns_lshl_b32 s14, s14, 2\ns_add_u32 s14, s14, 6000')
            if c.get('diagwg') is not None:
                A(f's_cmp_lg_u32 s2, {c["diagwg"]}\ns_cbranch_scc1 L_end')
            A('L_diag:\ns_sleep 2\ns_memrealtime s[98:99]\ns_waitcnt lgkmcnt(0)\ns_sub_u32 s15, s98, s64\ns_cmp_lt_u32 s15, s14\ns_cbranch_scc1 L_diag')
        else:
            store_stamps(0, 8, 0)
    A('L_end:\ns_endpgm')

    body = A.render()
    return (HEADER + f'; @launch grid=(256,1,1) block=(320,1,1) lds={LDS_BYTES}\n'
            '.amdgcn_target "amdgcn-amd-amdhsa--gfx950"\n.text\n'
            f'.globl {NAME}_kernel\n.p2align 8\n.type {NAME}_kernel,@function\n' + body +
            f'''.section .rodata,"a"
.p2align 6
.amdhsa_kernel {NAME}_kernel
  .amdhsa_next_free_vgpr 256
  .amdhsa_next_free_sgpr 102
  .amdhsa_accum_offset 256
  .amdhsa_group_segment_fixed_size 0
  .amdhsa_kernarg_size 96
  .amdhsa_user_sgpr_count 2
  .amdhsa_user_sgpr_kernarg_segment_ptr 1
  .amdhsa_system_sgpr_workgroup_id_x 1
.end_amdhsa_kernel
''')


if __name__ == '__main__':
    out = sys.argv[1]
    kw = {}
    for a in sys.argv[2:]:
        k, v = a.split('=', 1)
        kw[k] = int(v) if v.lstrip('-').isdigit() else v.replace('+', ' ')
    open(out, 'w').write(gen(**kw))
```
